```python
import torch

def _softmax(x, axis=-1):
    return torch.softmax(x, dim=axis)
def _gelu(x):
    return torch.nn.functional.gelu(x, approximate="tanh")
def _silu(x):
    return torch.nn.functional.silu(x)
def _sigmoid(x):
    return torch.sigmoid(x)
def _layernorm(x, axis=-1, eps=1e-5):
    m = x.mean(dim=axis, keepdim=True)
    v = x.var(dim=axis, keepdim=True, unbiased=False)
    return (x - m) / torch.sqrt(v + eps)
def _scatter_add(tgt, idx, src, axis=0):
    return tgt.clone().index_add_(axis, idx, src)
def _segment_sum(src, seg, n):
    out = torch.zeros((n,) + src.shape[1:], dtype=src.dtype)
    return out.index_add_(0, seg, src)
def _pad(x, pw):
    flat = tuple(v for pair in reversed(pw) for v in pair)
    return torch.nn.functional.pad(x, flat)

kernel_name = 'concat_heads__gqa_block_cached__gqa_block_cached__near_ridge'

def setup_inputs():

    _w = (lambda a: (lambda t: t.to(torch.bfloat16) if t.is_floating_point() else t)(torch.as_tensor(a)))
    def _A_setup():
        B, Sq, D = 16, 144, 640
        Hq, Hkv, Sk, Dh = 32, 32, 512, 128
        assert Hq % Hkv == 0, (Hq, Hkv)
        return {
            "x": _w((lambda *s: torch.randn(*s, dtype=torch.bfloat16) * 0.8)(B, Sq, D)),
            "k_cache": _w((lambda *s: torch.randn(*s, dtype=torch.bfloat16) * 0.8)(B, Hkv, Sk, Dh)),
            "v_cache": _w((lambda *s: torch.randn(*s, dtype=torch.bfloat16) * 0.05)(B, Hkv, Sk, Dh)),
            "wq": _w((lambda *s: torch.randn(*s, dtype=torch.bfloat16) * 0.8)(D, Hq * Dh) * (D ** -0.5)),
            "wo": _w((lambda *s: torch.randn(*s, dtype=torch.bfloat16) * 0.05)(Hq * Dh, D) * ((Hq * Dh) ** -0.5)),
        }
    _A_in = _A_setup()

    def _B_setup():
        B, Sq, D = 16, 144, 640
        Hq, Hkv, Sk, Dh = 32, 32, 512, 128
        assert Hq % Hkv == 0, (Hq, Hkv)
        return {
            "x": _w((lambda *s: torch.randn(*s, dtype=torch.bfloat16) * 0.8)(B, Sq, D)),
            "k_cache": _w((lambda *s: torch.randn(*s, dtype=torch.bfloat16) * 0.8)(B, Hkv, Sk, Dh)),
            "v_cache": _w((lambda *s: torch.randn(*s, dtype=torch.bfloat16) * 0.05)(B, Hkv, Sk, Dh)),
            "wq": _w((lambda *s: torch.randn(*s, dtype=torch.bfloat16) * 0.8)(D, Hq * Dh) * (D ** -0.5)),
            "wo": _w((lambda *s: torch.randn(*s, dtype=torch.bfloat16) * 0.05)(Hq * Dh, D) * ((Hq * Dh) ** -0.5)),
        }
    _B_in = _B_setup()

    return {
        "A_x": _A_in["x"],
        "A_k_cache": _A_in["k_cache"],
        "A_v_cache": _A_in["v_cache"],
        "A_wq": _A_in["wq"],
        "A_wo": _A_in["wo"],
        "B_x": _B_in["x"],
        "B_k_cache": _B_in["k_cache"],
        "B_v_cache": _B_in["v_cache"],
        "B_wq": _B_in["wq"],
        "B_wo": _B_in["wo"],
    }

def reference(A_x, A_k_cache, A_v_cache, A_wq, A_wo, B_x, B_k_cache, B_v_cache, B_wq, B_wo):
    def _A_ref(x, k_cache, v_cache, wq, wo):
        B, Sq, D = x.shape
        Hq, Dh = 32, 128
        Hkv = k_cache.shape[1]
        rep = Hq // Hkv
        q = (lambda x, *d: x.permute(*d))((x @ wq).reshape(B, Sq, Hq, Dh), 0, 2, 1, 3)
        k = (lambda x, n, axis: torch.repeat_interleave(x, n, dim=axis))(k_cache, rep, axis=1)
        v = (lambda x, n, axis: torch.repeat_interleave(x, n, dim=axis))(v_cache, rep, axis=1)
        scores = torch.einsum("bhqd,bhkd->bhqk", q, k) * (Dh ** -0.5)
        p = _softmax(scores, axis=-1)
        o = torch.einsum("bhqk,bhkd->bhqd", p, v)
        return (lambda x, *d: x.permute(*d))(o, 0, 2, 1, 3).reshape(B, Sq, Hq * Dh) @ wo

    def _B_ref(x, k_cache, v_cache, wq, wo):
        B, Sq, D = x.shape
        Hq, Dh = 32, 128
        Hkv = k_cache.shape[1]
        rep = Hq // Hkv
        q = (lambda x, *d: x.permute(*d))((x @ wq).reshape(B, Sq, Hq, Dh), 0, 2, 1, 3)
        k = (lambda x, n, axis: torch.repeat_interleave(x, n, dim=axis))(k_cache, rep, axis=1)
        v = (lambda x, n, axis: torch.repeat_interleave(x, n, dim=axis))(v_cache, rep, axis=1)
        scores = torch.einsum("bhqd,bhkd->bhqk", q, k) * (Dh ** -0.5)
        p = _softmax(scores, axis=-1)
        o = torch.einsum("bhqk,bhkd->bhqd", p, v)
        return (lambda x, *d: x.permute(*d))(o, 0, 2, 1, 3).reshape(B, Sq, Hq * Dh) @ wo

    a = _A_ref(A_x, A_k_cache, A_v_cache, A_wq, A_wo)
    b = _B_ref(B_x, B_k_cache, B_v_cache, B_wq, B_wo)
    return torch.concatenate([a, b], axis=-1)
```

```python
def V(a, n=1): return [('v', a + i) for i in range(n)]
def S(a, n=1): return [('s', a + i) for i in range(n)]
def vr(a, n=1):
    p = "v"
    if a >= 256: p = "a"; a -= 256
    return f"{p}{a}" if n == 1 else f"{p}[{a}:{a+n-1}]"
def sr(a, n=1): return f"s{a}" if n == 1 else f"s[{a}:{a+n-1}]"

class Em:
    def __init__(self):
        self.lines = []
        self.hist = []
        self.pos = 0
        self.vm = []
        self.lg = []
    def raw(self, t):
        self.lines.append(t)
    def label(self, l):
        self.lines.append(l + ":")
    def barrier_hist(self, n=16):
        self.nop(n)
    def nop(self, n):
        while n > 0:
            k = min(n, 16)
            self.lines.append(f"    s_nop {k-1}")
            self.pos += k
            n -= k
    def need(self, kind, w, r, srcc, ab, dt):
        req = 0
        isv = kind in ('valu', 'trans', 'perm', 'rdlane', 'dpp')
        for (p, k, pw, pr, pc, pdt) in self.hist:
            d = self.pos - p - 1
            n = 0
            pv = k in ('valu', 'trans', 'perm', 'rdlane', 'dpp')
            pm = k in ('mfma32', 'mfma16')
            if pv and kind in ('mfma32', 'mfma16') and (pw & r): n = max(n, 2)
            if pm:
                big = 12 if k == 'mfma32' else 8
                if kind in ('mfma32', 'mfma16'):
                    if pw & ab: n = max(n, big)
                    if pw & srcc:
                        if not (pdt == dt and k == kind and srcc == pw): n = max(n, big - 2)
                    elif pw & w: n = max(n, big)
                else:
                    if (pw & r) or (pw & w): n = max(n, big)
                    if isv and (pc & w): n = max(n, 7 if k == 'mfma32' else 3)
            if k == 'trans' and isv and kind != 'trans' and (pw & r): n = max(n, 1)
            if k == 'trans' and kind == 'trans' and (pw & r): n = max(n, 1)
            if pv and kind in ('perm', 'dpp') and (pw & r): n = max(n, 2)
            if pv and kind == 'rdlane' and (pw & r): n = max(n, 1)
            if pv:
                sw = {x for x in pw if x[0] in ('s', 'vcc')}
                if sw & r:
                    if isv: n = max(n, 2)
                    elif kind in ('vload', 'vstore', 'dma'): n = max(n, 5)
                    else: n = max(n, 2)
            if k == 'salu' and ('m0', 0) in pw and kind == 'dma': n = max(n, 1)
            if k in ('vstore', 'dswrite') and isv and (pr & w): n = max(n, 2)
            if k in ('vstore', 'dswrite') and kind in ('vload', 'dsread') and (pr & w): n = max(n, 1)
            if n > d: req = max(req, n - d)
        return req
    def ins(self, text, kind, w=(), r=(), srcc=(), ab=(), dt=None):
        w = frozenset(w); r = frozenset(r) | frozenset(srcc) | frozenset(ab)
        srcc = frozenset(srcc); ab = frozenset(ab)
        n = self.need(kind, w, r, srcc, ab, dt)
        if n: self.nop(n)
        self.lines.append("    " + text)
        self.hist.append((self.pos, kind, w, r, srcc, dt))
        self.pos += 1
        if len(self.hist) > 24: self.hist.pop(0)
    def s(self, text, w=(), r=()): self.ins(text, 'salu', w, r)
    def v(self, text, w=(), r=()): self.ins(text, 'valu', w, r)
    def t(self, text, w=(), r=()): self.ins(text, 'trans', w, r)
    def mfma32(self, d, a, b, c=None):
        cs = "0" if c is None else vr(c, 16)
        self.ins(f"v_mfma_f32_32x32x16_bf16 {vr(d,16)}, {vr(a,4)}, {vr(b,4)}, {cs}", 'mfma32',
                 w=V(d, 16), srcc=V(c, 16) if c is not None else (), ab=V(a, 4) + V(b, 4), dt=(d, 16))
    def mfma16(self, d, a, b, c=None):
        cs = "0" if c is None else vr(c, 4)
        self.ins(f"v_mfma_f32_16x16x32_bf16 {vr(d,4)}, {vr(a,4)}, {vr(b,4)}, {cs}", 'mfma16',
                 w=V(d, 4), srcc=V(c, 4) if c is not None else (), ab=V(a, 4) + V(b, 4), dt=(d, 4))
    def mfma16k16(self, d, a, b, c=None):
        cs = "0" if c is None else vr(c, 4)
        self.ins(f"v_mfma_f32_16x16x16_bf16 {vr(d,4)}, {vr(a,2)}, {vr(b,2)}, {cs}", 'mfma16',
                 w=V(d, 4), srcc=V(c, 4) if c is not None else (), ab=V(a, 2) + V(b, 2), dt=(d, 4))
    def dsr(self, op, d, n, addr, off, tag):
        assert 0 <= off < 65536, off
        self.ins(f"{op} {vr(d,n)}, v{addr} offset:{off}", 'dsread', w=V(d, n), r=V(addr))
        self.lg.append(tag)
    def dsw(self, op, addr, s, n, off, tag='w'):
        assert 0 <= off < 65536, off
        self.ins(f"{op} v{addr}, {vr(s,n)} offset:{off}", 'dswrite', r=V(addr) + V(s, n))
        self.lg.append(tag)
    def bload(self, d, n, voff, srd, soff, off, tag, fl=""):
        op = {1: "buffer_load_dword", 2: "buffer_load_dwordx2", 4: "buffer_load_dwordx4"}[n]
        so = f"s{soff}" if isinstance(soff, int) else soff
        rr = V(voff) + S(srd, 4) + (S(soff) if isinstance(soff, int) else [])
        self.ins(f"{op} {vr(d,n)}, v{voff}, {sr(srd,4)}, {so} offen offset:{off}{fl}", 'vload', w=V(d, n), r=rr)
        self.vm.append(tag)
    def bstore(self, s_, n, voff, srd, soff, off, tag='st', fl=""):
        op = {1: "buffer_store_dword", 2: "buffer_store_dwordx2", 4: "buffer_store_dwordx4"}[n]
        so = f"s{soff}" if isinstance(soff, int) else soff
        rr = V(voff) + V(s_, n) + S(srd, 4) + (S(soff) if isinstance(soff, int) else [])
        self.ins(f"{op} {vr(s_,n)}, v{voff}, {sr(srd,4)}, {so} offen offset:{off}{fl}", 'vstore', r=rr)
        self.vm.append(tag)
    def dma(self, voff, srd, soff, off, tag, fl=""):
        so = f"s{soff}" if isinstance(soff, int) else soff
        rr = V(voff) + S(srd, 4) + (S(soff) if isinstance(soff, int) else []) + [('m0', 0)]
        self.ins(f"buffer_load_dwordx4 v{voff}, {sr(srd,4)}, {so} offen offset:{off}{fl} lds", 'dma', r=rr)
        self.vm.append(tag)
    def _cnt(self, lst, tags):
        last = -1
        for i, t in enumerate(lst):
            if t in tags: last = i
        if last < 0: return None
        return len(lst) - 1 - last
    def wait(self, vm=(), lg=(), vm0=False, lg0=False):
        parts = []
        if vm0 or vm:
            n = 0 if vm0 else self._cnt(self.vm, set(vm))
            if n is not None and (self.vm or vm0):
                n = min(n, 63)
                parts.append(f"vmcnt({n})")
                self.vm = self.vm[len(self.vm) - n:] if n else []
        if lg0 or lg:
            n = 0 if lg0 else self._cnt(self.lg, set(lg))
            if n is not None and (self.lg or lg0):
                n = min(n, 15)
                parts.append(f"lgkmcnt({n})")
                self.lg = self.lg[len(self.lg) - n:] if n else []
        if parts:
            self.ins("s_waitcnt " + " ".join(parts), 'salu')
    def barrier(self):
        self.ins("s_barrier", 'salu')
    def text(self):
        return "\n".join(self.lines) + "\n"
```

```python
from emit import *
import math, struct
def f2u(f): return struct.unpack('<I', struct.pack('<f', f))[0]
CSC = math.log2(math.e) / math.sqrt(128.0)
THR = 8.0 / CSC
SLOT = 16384; NSLOT = 4
Q9B = 65536
MLB = 65536 + 4096
LDS1 = 65536 + 4096 + 1024
R_O, R_S, R_Q, R_F, R_O9, R_T = 0, 64, 96, 128, 160, 192
R_QA = 128
S9, P9 = 208, 212
M_, L_, M9, L9, MC, MC9 = 214, 215, 216, 217, 218, 219
T0 = 220
vAW = 208
vKA, vVA, vK9, vV9, vDK, vDV, vDW, vX, vX9 = 226, 234, 238, 242, 243, 247, 249, 251, 252
vL, vT1, vT2 = 253, 254, 255
sX, sK, sV, sW, sO = 8, 12, 16, 20, 24
sWV, sBR, sB, sH, sXO, sWO, sKO, sLW, sC, sTH = 28, 29, 30, 31, 32, 34, 35, 36, 37, 38
sT0, sT1, sT2 = 40, 41, 42
KVFL = " nt"

def load_ptrs(e):
    e.s("s_load_dwordx16 s[64:79], s[0:1], 0", w=S(64, 16))
    e.s("s_load_dwordx4 s[80:83], s[0:1], 64", w=S(80, 4))
    e.s("s_load_dwordx2 s[84:85], s[0:1], 80", w=S(84, 2))
    e.s("s_load_dwordx2 s[86:87], s[0:1], 96", w=S(86, 2))

def mk_srd(e, d, a, b, size):
    if b is None:
        e.s(f"s_mov_b32 s{d}, s{a}"); e.s(f"s_and_b32 s{d+1}, s{a+1}, 0xffff")
    else:
        e.s(f"s_cselect_b32 s{d}, s{a}, s{b}"); e.s(f"s_cselect_b32 s{d+1}, s{a+1}, s{b+1}")
    e.s(f"s_mov_b32 s{d+2}, {size}"); e.s(f"s_mov_b32 s{d+3}, 0x00020000")

def gen_k1(name):
    e = Em()
    e.label(name)
    e.s("s_cmp_ge_u32 s2, 1024"); e.s(f"s_cbranch_scc1 {name}_end")
    load_ptrs(e)
    e.v(f"v_and_b32 v{vL}, 63, v0", w=V(vL), r=V(0))
    e.v(f"v_lshrrev_b32 v{vT1}, 6, v0", w=V(vT1), r=V(0))
    e.ins(f"v_readfirstlane_b32 s{sWV}, v{vT1}", 'rdlane', w=S(sWV), r=V(vT1))
    e.s("s_and_b32 s3, s2, 7"); e.s("s_lshr_b32 s4, s2, 3")
    e.s(f"s_lshr_b32 s{sBR}, s3, 2")
    e.s("s_and_b32 s3, s3, 3"); e.s("s_lshl_b32 s3, s3, 3"); e.s("s_and_b32 s5, s4, 7")
    e.s(f"s_add_u32 s{sH}, s3, s5"); e.s(f"s_lshr_b32 s{sB}, s4, 3")
    e.s(f"s_mov_b32 s{sC}, {f2u(CSC)}"); e.s(f"s_mov_b32 s{sTH}, {f2u(THR)}")
    e.s(f"s_mul_i32 s{sXO}, s{sB}, 184320")
    e.s(f"s_lshl_b32 s{sLW}, s{sWV}, 12", r=S(sWV))
    e.s(f"s_lshl_b32 s3, s{sWV}, 17"); e.s(f"s_lshl_b32 s4, s{sH}, 8"); e.s(f"s_add_u32 s{sWO}, s3, s4")
    e.s(f"s_lshl_b32 s3, s{sB}, 5"); e.s(f"s_add_u32 s3, s3, s{sH}"); e.s("s_lshl_b32 s3, s3, 17")
    e.s(f"s_add_u32 s{sKO}, s3, s{sLW}")
    A, Bq, C_, D_, E_, F_ = T0, T0+1, T0+2, T0+3, T0+4, T0+5
    def vv(t, w, r=()): e.v(t, w=V(w), r=[x for a in r for x in V(a)])
    vv(f"v_lshrrev_b32 v{A}, 4, v{vL}", A, [vL])
    vv(f"v_and_b32 v{Bq}, 15, v{vL}", Bq, [vL])
    for u in range(4):
        vv(f"v_add_u32 v{C_}, {4*u}, v{A}", C_, [A])
        vv(f"v_xor_b32 v{C_}, v{C_}, v{Bq}", C_, [C_, Bq])
        vv(f"v_lshlrev_b32 v{C_}, 4, v{C_}", C_, [C_])
        vv(f"v_lshl_add_u32 v{vDK+u}, v{A}, 8, v{C_}", vDK+u, [A, C_])
    for ee in range(2):
        vv(f"v_lshlrev_b32 v{C_}, 2, v{A}", C_, [A])
        vv(f"v_xor_b32 v{C_}, v{C_}, v{Bq}", C_, [C_, Bq])
        if ee: vv(f"v_xor_b32 v{C_}, 2, v{C_}", C_, [C_])
        vv(f"v_lshlrev_b32 v{C_}, 4, v{C_}", C_, [C_])
        vv(f"v_lshl_add_u32 v{vDV+ee}, v{A}, 8, v{C_}", vDV+ee, [A, C_])
        vv(f"v_lshl_add_u32 v{vDW+ee}, v{A}, 13, v{C_}", vDW+ee, [A, C_])
    e.s("s_movk_i32 s3, 1280", w=S(3))
    e.s(f"s_lshl_b32 s4, s{sWV}, 5", w=S(4))
    vv(f"v_and_b32 v{C_}, 31, v{vL}", C_, [vL])
    vv(f"v_lshrrev_b32 v{D_}, 5, v{vL}", D_, [vL])
    vv(f"v_add_u32 v{E_}, s4, v{C_}", E_, [C_])
    vv(f"v_mul_lo_u32 v{E_}, v{E_}, s3", E_, [E_])
    vv(f"v_lshl_add_u32 v{vX}, v{D_}, 6, v{E_}", vX, [D_, E_])
    vv(f"v_add_u32 v{E_}, 128, v{Bq}", E_, [Bq])
    vv(f"v_mul_lo_u32 v{E_}, v{E_}, s3", E_, [E_])
    vv(f"v_lshl_add_u32 v{vX9}, v{D_}, 6, v{E_}", vX9, [D_, E_])
    e.wait(lg0=True)
    e.s(f"s_cmp_eq_u32 s{sBR}, 0")
    mk_srd(e, sX, 64, 74, 2949120); mk_srd(e, sK, 66, 76, 67108864); mk_srd(e, sV, 68, 78, 67108864)
    mk_srd(e, sW, 70, 80, 5242880); mk_srd(e, sO, 86, None, 37748736)

    def issue_dma(t):
        if t > 25: return
        base = (t % NSLOT) * SLOT
        if t < 10:
            for u in range(4):
                e.s(f"s_add_u32 s{sT0}, s{sWO}, {t*524288 + u*32768}", w=S(sT0))
                e.s(f"s_add_u32 m0, s{sLW}, {base + u*1024}", w=[('m0', 0)])
                e.dma(vDW + (u & 1), sW, sT0, 0, ('slot', t))
        else:
            j = (t - 10) // 2; isv = (t - 10) % 2
            e.s(f"s_add_u32 s{sT0}, s{sKO}, {j*16384}", w=S(sT0))
            e.s(f"s_add_u32 m0, s{sLW}, {base}", w=[('m0', 0)])
            for u in range(4):
                if isv: e.dma(vDV + (u & 1), sV, sT0, u*1024, ('slot', t), KVFL)
                else: e.dma(vDK + u, sK, sT0, u*1024, ('slot', t), KVFL)
    XB = [0, 32, 64]
    def issue_x(c):
        if c > 9: return
        e.s(f"s_add_u32 s{sT1}, s{sXO}, {c*128}", w=S(sT1))
        b0 = XB[c % 3]
        for s in range(4): e.bload(b0 + 4*s, 4, vX, sX, sT1, 16*s, ('x', c))
        for s in range(4): e.bload(b0 + 16 + 4*s, 4, vX9, sX, sT1, 16*s, ('x', c))
    issue_x(0); issue_dma(0); issue_x(1); issue_dma(1); issue_dma(2)
    R4, CC, DH = E_, F_, vT1
    vv(f"v_lshrrev_b32 v{R4}, 2, v{Bq}", R4, [Bq])
    vv(f"v_and_b32 v{CC}, 3, v{vL}", CC, [vL])
    vv(f"v_and_b32 v{DH}, 1, v{A}", DH, [A])
    LOWC, SUB = vKA, vKA + 1
    vv(f"v_and_b32 v{LOWC}, 1, v{CC}", LOWC, [CC])
    vv(f"v_lshl_add_u32 v{LOWC}, v{DH}, 1, v{LOWC}", LOWC, [DH, LOWC])
    vv(f"v_lshrrev_b32 v{SUB}, 1, v{CC}", SUB, [CC])
    vv(f"v_lshlrev_b32 v{SUB}, 3, v{SUB}", SUB, [SUB])
    X1, X2 = vKA + 2, vKA + 3
    for u in range(4):
        e.s(f"s_add_u32 s3, s{sWV}, {u}", w=S(3)); e.s("s_and_b32 s3, s3, 3", w=S(3))
        vv(f"v_xor_b32 v{X1}, s3, v{R4}", X1, [R4])
        for ee in range(2):
            d = vAW + 2*u + ee
            vv(f"v_xor_b32 v{X2}, {2*ee}, v{LOWC}", X2, [LOWC])
            vv(f"v_lshl_add_u32 v{X2}, v{X1}, 2, v{X2}", X2, [X1, X2])
            vv(f"v_lshl_add_u32 v{X2}, v{X2}, 4, v{SUB}", X2, [X2, SUB])
            vv(f"v_lshl_add_u32 v{X2}, v{R4}, 8, v{X2}", X2, [R4, X2])
            vv(f"v_lshl_add_u32 v{d}, v{D_}, 13, v{X2}", d, [D_, X2])
            if ee: vv(f"v_add_u32 v{d}, 1024, v{d}", d, [d])
    for t in range(4):
        vv(f"v_xor_b32 v{X1}, {t}, v{R4}", X1, [R4])
        vv(f"v_lshlrev_b32 v{X2}, 1, v{D_}", X2, [D_])
        vv(f"v_xor_b32 v{X2}, v{X2}, v{LOWC}", X2, [X2, LOWC])
        vv(f"v_lshl_add_u32 v{X2}, v{X1}, 2, v{X2}", X2, [X1, X2])
        vv(f"v_lshl_add_u32 v{X2}, v{X2}, 4, v{SUB}", X2, [X2, SUB])
        vv(f"v_lshl_add_u32 v{X2}, v{R4}, 8, v{X2}", X2, [R4, X2])
        vv(f"v_lshl_add_u32 v{vVA+t}, v{D_}, 10, v{X2}", vVA+t, [D_, X2])
    vv(f"v_lshrrev_b32 v{X1}, 1, v{CC}", X1, [CC])
    vv(f"v_lshl_or_b32 v{X1}, v{R4}, 2, v{X1}", X1, [R4, X1])
    vv(f"v_lshlrev_b32 v{X2}, 1, v{DH}", X2, [DH])
    vv(f"v_xor_b32 v{X1}, v{X1}, v{X2}", X1, [X1, X2])
    vv(f"v_and_b32 v{X2}, 1, v{CC}", X2, [CC])
    vv(f"v_lshlrev_b32 v{X2}, 3, v{X2}", X2, [X2])
    vv(f"v_lshl_add_u32 v{X1}, v{X1}, 4, v{X2}", X1, [X1, X2])
    vv(f"v_lshl_add_u32 v{X1}, v{R4}, 8, v{X1}", X1, [R4, X1])
    vv(f"v_lshl_add_u32 v{X1}, v{A}, 10, v{X1}", X1, [A, X1])
    vv(f"v_add_u32 v{vV9}, s{sLW}, v{X1}", vV9, [X1])
    vv(f"v_xor_b32 v{X1}, v{A}, v{Bq}", X1, [A, Bq])
    vv(f"v_lshlrev_b32 v{X1}, 4, v{X1}", X1, [X1])
    vv(f"v_lshl_add_u32 v{X1}, v{Bq}, 8, v{X1}", X1, [Bq, X1])
    for s in range(4): vv(f"v_xor_b32 v{vK9+s}, {64*s}, v{X1}", vK9+s, [X1])
    e.s(f"s_lshl_b32 s3, s{sWV}, 2", w=S(3))
    vv(f"v_add_u32 v{X1}, s3, v{D_}", X1, [D_])
    vv(f"v_xor_b32 v{X1}, v{X1}, v{Bq}", X1, [X1, Bq])
    vv(f"v_lshlrev_b32 v{X1}, 4, v{X1}", X1, [X1])
    vv(f"v_lshl_add_u32 v{vT2}, v{Bq}, 8, v{X1}", vT2, [Bq, X1])
    vv(f"v_xor_b32 v{vT1}, v{D_}, v{Bq}", vT1, [D_, Bq])
    vv(f"v_lshlrev_b32 v{vT1}, 4, v{vT1}", vT1, [vT1])
    vv(f"v_lshl_add_u32 v{vT1}, v{C_}, 8, v{vT1}", vT1, [C_, vT1])
    for u in range(4):
        e.s(f"s_add_u32 s3, s{sWV}, {u}", w=S(3)); e.s("s_and_b32 s3, s3, 3", w=S(3)); e.s("s_lshl_b32 s3, s3, 6", w=S(3))
        vv(f"v_xor_b32 v{vKA+2*u}, s3, v{vT1}", vKA+2*u, [vT1])
        vv(f"v_xor_b32 v{vKA+2*u+1}, 32, v{vKA+2*u}", vKA+2*u+1, [vKA+2*u])

    def step_sync(t, extra_vm=()):
        e.wait(vm=[('slot', t)] + list(extra_vm), lg0=True)
        e.barrier()
        issue_dma(t + 3)
    for c in range(10):
        step_sync(c, [('x', c)])
        base = (c % NSLOT) * SLOT
        xb = XB[c % 3]
        def rd(s):
            for u in range(4):
                d = R_Q + (s % 2) * 16 + 4*u
                for ee in range(2):
                    e.dsr("ds_read_b64_tr_b16", d + 2*ee, 2, vAW + 2*u + ee, base + 2048*s, ('a', c, s, u))
        rd(0); rd(1)
        issue_x(c + 2)
        for s in range(4):
            first = (c == 0 and s == 0)
            for u in range(4):
                e.wait(lg=[('a', c, s, u)])
                a = R_Q + (s % 2) * 16 + 4*u
                e.mfma32(R_QA + 16*u, a, xb + 4*s, None if first else R_QA + 16*u)
                if u == 0: e.mfma32(R_T, a, xb + 16 + 4*s, None if first else R_T)
            if s + 2 < 4: rd(s + 2)
    for k in range(8):
        e.v(f"v_cvt_pk_bf16_f32 v{R_T+k}, v{R_T+2*k}, v{R_T+2*k+1}", w=V(R_T+k), r=V(R_T+2*k, 2))
    e.v(f"v_add_u32 v{vT2}, {Q9B}, v{vT2}", w=V(vT2), r=V(vT2))
    e.v(f"v_xor_b32 v{vT1}, 32, v{vT2}", w=V(vT1), r=V(vT2))
    e.dsw("ds_write_b128", vT2, R_T, 4, 0); e.dsw("ds_write_b128", vT1, R_T + 4, 4, 0)
    for k in range(32):
        e.v(f"v_cvt_pk_bf16_f32 v{R_Q+k}, v{R_QA+2*k}, v{R_QA+2*k+1}", w=V(R_Q+k), r=V(R_QA+2*k, 2))
    resc = []
    for j in range(8):
        tK, tV = 10 + 2*j, 11 + 2*j
        bK, bV = (tK % NSLOT) * SLOT, (tV % NSLOT) * SLOT
        step_sync(tK)
        if j == 0:
            for s in range(4):
                e.v(f"v_add_u32 v{T0+s}, {Q9B}, v{vK9+s}", w=V(T0+s), r=V(vK9+s))
                e.dsr("ds_read_b128", R_T + 4*s, 4, T0 + s, 0, 'q9')
                e.v(f"v_add_u32 v{vK9+s}, s{sLW}, v{vK9+s}", w=V(vK9+s), r=V(vK9+s))
        items = [('m', kt, s) for kt in range(2) for s in range(8)] + [('t', 0, s) for s in range(4)]
        def krd(i):
            k, kt, s = items[i]
            d = R_F + 4*(i % 8)
            if k == 'm': e.dsr("ds_read_b128", d, 4, vKA + s, bK + 8192*kt, ('k', j, i))
            else: e.dsr("ds_read_b128", d, 4, vK9 + s, bK, ('k', j, i))
        for i in range(8): krd(i)
        for i in range(20):
            k, kt, s = items[i]
            e.wait(lg=[('k', j, i)] + (['q9'] if k == 't' else []))
            a = R_F + 4*(i % 8)
            if k == 'm': e.mfma32(R_S + 16*kt, a, R_Q + 4*s, None if s == 0 else R_S + 16*kt)
            else: e.mfma16(S9, a, R_T + 4*s, None if s == 0 else S9)
            if i + 8 < 20: krd(i + 8)
        step_sync(tV)
        vitems = [('m', t, s) for s in range(4) for t in range(4)] + [('t', t9, 0) for t9 in range(0, 8, 2)]
        def vrd(i):
            k, t, s = vitems[i]
            d = R_F + 4*(i % 8)
            if k == 'm':
                for ee in range(2):
                    e.dsr("ds_read_b64_tr_b16", d + 2*ee, 2, vVA + t, bV + 4096*s + 2048*ee, ('v', j, i))
            else:
                for ee in range(2):
                    tt = T0 + 4 + ee
                    e.v(f"v_xor_b32 v{tt}, {32*(t+ee)}, v{vV9}", w=V(tt), r=V(vV9))
                    e.dsr("ds_read_b64_tr_b16", d + 2*ee, 2, tt, bV, ('v', j, i))
        for i in range(7): vrd(i)
        BM, B2, BM9, B29 = T0, T0+1, T0+2, T0+3
        e.v(f"v_max3_f32 v{BM}, v{R_S}, v{R_S+1}, v{R_S+2}", w=V(BM), r=V(R_S, 3))
        e.v(f"v_max3_f32 v{B2}, v{R_S+3}, v{R_S+4}, v{R_S+5}", w=V(B2), r=V(R_S+3, 3))
        k = 6
        tog = 0
        while k < 32:
            d = BM if tog == 0 else B2
            e.v(f"v_max3_f32 v{d}, v{d}, v{R_S+k}, v{R_S+k+1}", w=V(d), r=V(d) + V(R_S+k, 2)); k += 2; tog ^= 1
        e.v(f"v_max3_f32 v{BM9}, v{S9}, v{S9+1}, v{S9+2}", w=V(BM9), r=V(S9, 3))
        e.v(f"v_max_f32 v{BM}, v{BM}, v{B2}", w=V(BM), r=V(BM) + V(B2))
        e.v(f"v_max_f32 v{BM9}, v{BM9}, v{S9+3}", w=V(BM9), r=V(BM9) + V(S9+3))
        e.v(f"v_mov_b32 v{B2}, v{BM}", w=V(B2), r=V(BM))
        e.v(f"v_mov_b32 v{B29}, v{BM9}", w=V(B29), r=V(BM9))
        e.ins(f"v_permlane32_swap_b32 v{BM}, v{B2}", 'perm', w=V(BM) + V(B2), r=V(BM) + V(B2))
        e.ins(f"v_permlane32_swap_b32 v{BM9}, v{B29}", 'perm', w=V(BM9) + V(B29), r=V(BM9) + V(B29))
        e.v(f"v_max_f32 v{BM}, v{BM}, v{B2}", w=V(BM), r=V(BM) + V(B2))
        e.v(f"v_max_f32 v{BM9}, v{BM9}, v{B29}", w=V(BM9), r=V(BM9) + V(B29))
        e.v(f"v_mov_b32 v{B29}, v{BM9}", w=V(B29), r=V(BM9))
        e.ins(f"v_permlane16_swap_b32 v{BM9}, v{B29}", 'perm', w=V(BM9) + V(B29), r=V(BM9) + V(B29))
        e.v(f"v_max_f32 v{BM9}, v{BM9}, v{B29}", w=V(BM9), r=V(BM9) + V(B29))
        if j == 0:
            e.v(f"v_mov_b32 v{M_}, v{BM}", w=V(M_), r=V(BM)); e.v(f"v_mov_b32 v{M9}, v{BM9}", w=V(M9), r=V(BM9))
            e.v(f"v_mul_f32 v{MC}, s{sC}, v{BM}", w=V(MC), r=V(BM)); e.v(f"v_mul_f32 v{MC9}, s{sC}, v{BM9}", w=V(MC9), r=V(BM9))
        else:
            e.v(f"v_sub_f32 v{B2}, v{BM}, v{M_}", w=V(B2), r=V(BM) + V(M_))
            e.v(f"v_sub_f32 v{B29}, v{BM9}, v{M9}", w=V(B29), r=V(BM9) + V(M9))
            e.v(f"v_max_f32 v{B2}, v{B2}, v{B29}", w=V(B2), r=V(B2) + V(B29))
            e.v(f"v_cmp_lt_f32 vcc, s{sTH}, v{B2}", w=[('vcc', 0)], r=V(B2))
            e.nop(4)
            e.s(f"s_cbranch_vccnz {name}_rs{j}")
            e.label(f"{name}_rb{j}")
            resc.append(j)
        LA, LB = T0, T0+1
        def expo(r, mc):
            e.v(f"v_fma_f32 v{r}, v{r}, s{sC}, -v{mc}", w=V(r), r=V(r) + V(mc))
        for k in range(4): expo(S9 + k, MC9)
        for k in range(4): e.t(f"v_exp_f32 v{S9+k}, v{S9+k}", w=V(S9+k), r=V(S9+k))
        for g8 in range(4):
            b0 = R_S + 8*g8
            for k in range(8): expo(b0 + k, MC)
            if g8 == 0:
                e.v(f"v_add_f32 v{B29}, v{S9}, v{S9+1}", w=V(B29), r=V(S9, 2))
                e.v(f"v_add_f32 v{BM9}, v{S9+2}, v{S9+3}", w=V(BM9), r=V(S9+2, 2))
                e.v(f"v_cvt_pk_bf16_f32 v{P9}, v{S9}, v{S9+1}", w=V(P9), r=V(S9, 2))
                e.v(f"v_cvt_pk_bf16_f32 v{P9+1}, v{S9+2}, v{S9+3}", w=V(P9+1), r=V(S9+2, 2))
                if j == 0: e.v(f"v_add_f32 v{L9}, v{B29}, v{BM9}", w=V(L9), r=V(B29) + V(BM9))
                else: e.v(f"v_add3_f32 v{L9}, v{L9}, v{B29}, v{BM9}" if False else f"v_add_f32 v{B29}, v{B29}, v{BM9}", w=V(B29), r=V(B29) + V(BM9))
                if j > 0: e.v(f"v_add_f32 v{L9}, v{L9}, v{B29}", w=V(L9), r=V(L9) + V(B29))
            for k in range(8): e.t(f"v_exp_f32 v{b0+k}, v{b0+k}", w=V(b0+k), r=V(b0+k))
            for k in range(4):
                a, b = b0 + 2*k, b0 + 2*k + 1
                if g8 == 0 and k == 0:
                    e.v(f"v_mov_b32 v{LA}, v{a}", w=V(LA), r=V(a)); e.v(f"v_mov_b32 v{LB}, v{b}", w=V(LB), r=V(b))
                else:
                    e.v(f"v_add_f32 v{LA}, v{LA}, v{a}", w=V(LA), r=V(LA) + V(a)); e.v(f"v_add_f32 v{LB}, v{LB}, v{b}", w=V(LB), r=V(LB) + V(b))
                e.v(f"v_cvt_pk_bf16_f32 v{b0+k}, v{a}, v{b}", w=V(b0+k), r=V(a) + V(b))
        e.v(f"v_add_f32 v{LA}, v{LA}, v{LB}", w=V(LA), r=V(LA) + V(LB))
        if j == 0: e.v(f"v_mov_b32 v{L_}, v{LA}", w=V(L_), r=V(LA))
        else: e.v(f"v_add_f32 v{L_}, v{L_}, v{LA}", w=V(L_), r=V(L_) + V(LA))
        vrd(7)
        for i in range(20):
            k, t, s = vitems[i]
            e.wait(lg=[('v', j, i)])
            a = R_F + 4*(i % 8)
            if k == 'm':
                e.mfma32(R_O + 16*t, a, R_S + 8*s, None if (j == 0 and s == 0) else R_O + 16*t)
            else:
                for ee in range(2):
                    e.mfma16k16(R_O9 + 4*(t+ee), a + 2*ee, P9, None if j == 0 else R_O9 + 4*(t+ee))
            if i + 8 < 20: vrd(i + 8)
    e.wait(lg0=True); e.barrier()
    X1, X2, X3, X4 = T0, T0+1, T0+2, T0+3
    e.v(f"v_mov_b32 v{X1}, v{L9}", w=V(X1), r=V(L9))
    e.v(f"v_mov_b32 v{X2}, v{L_}", w=V(X2), r=V(L_))
    e.ins(f"v_permlane32_swap_b32 v{L9}, v{X1}", 'perm', w=V(L9) + V(X1), r=V(L9) + V(X1))
    e.ins(f"v_permlane32_swap_b32 v{L_}, v{X2}", 'perm', w=V(L_) + V(X2), r=V(L_) + V(X2))
    e.v(f"v_add_f32 v{L9}, v{L9}, v{X1}", w=V(L9), r=V(L9) + V(X1))
    e.v(f"v_add_f32 v{L_}, v{L_}, v{X2}", w=V(L_), r=V(L_) + V(X2))
    e.v(f"v_mov_b32 v{X1}, v{L9}", w=V(X1), r=V(L9))
    e.t(f"v_rcp_f32 v{L_}, v{L_}", w=V(L_), r=V(L_))
    e.ins(f"v_permlane16_swap_b32 v{L9}, v{X1}", 'perm', w=V(L9) + V(X1), r=V(L9) + V(X1))
    e.v(f"v_add_f32 v{L9}, v{L9}, v{X1}", w=V(L9), r=V(L9) + V(X1))
    q16, gg = X1, X2
    e.v(f"v_and_b32 v{q16}, 15, v{vL}", w=V(q16), r=V(vL))
    e.v(f"v_lshrrev_b32 v{gg}, 4, v{vL}", w=V(gg), r=V(vL))
    e.s(f"s_mul_i32 s3, s{sWV}, 8448", w=S(3)); e.s("s_movk_i32 s4, 528", w=S(4))
    e.v(f"v_mul_lo_u32 v{X3}, v{q16}, s4", w=V(X3), r=V(q16))
    e.v(f"v_lshl_add_u32 v{X4}, v{gg}, 4, v{X3}", w=V(X4), r=V(gg) + V(X3))
    e.v(f"v_add_u32 v{X4}, s3, v{X4}", w=V(X4), r=V(X4))
    for t9 in range(8): e.dsw("ds_write_b128", X4, R_O9 + 4*t9, 4, 64*t9)
    e.s(f"s_lshl_b32 s3, s{sWV}, 7", w=S(3)); e.s(f"s_add_u32 s3, s3, {MLB}", w=S(3))
    e.v(f"v_lshlrev_b32 v{X4}, 3, v{q16}", w=V(X4), r=V(q16))
    e.v(f"v_add_u32 v{vT1}, s3, v{X4}", w=V(vT1), r=V(X4))
    e.v(f"v_mov_b32 v{M9}, v{MC9}", w=V(M9), r=V(MC9))
    e.dsw("ds_write_b64", vT1, M9, 2, 0)
    e.s(f"s_mul_i32 s3, s{sBR}, 72", w=S(3)); e.s(f"s_lshl_b32 s4, s{sB}, 2", w=S(4)); e.s("s_add_u32 s4, s4, s3", w=S(4))
    e.s(f"s_add_u32 s4, s4, s{sWV}", w=S(4)); e.s("s_lshl_b32 s4, s4, 18", w=S(4))
    e.s(f"s_lshl_b32 s5, s{sH}, 13", w=S(5)); e.s(f"s_add_u32 s{sT0}, s4, s5", w=S(sT0))
    e.s(f"s_add_u32 s{sT1}, s{sT0}, 4096", w=S(sT1))
    e.s(f"s_lshr_b32 s4, s{sB}, 1", w=S(4)); e.s("s_add_u32 s4, s4, s3", w=S(4)); e.s("s_add_u32 s4, s4, 64", w=S(4))
    e.s("s_lshl_b32 s4, s4, 18", w=S(4)); e.s(f"s_add_u32 s{sT2}, s4, s5", w=S(sT2))
    e.v(f"v_lshlrev_b32 v{vT2}, 4, v{vL}", w=V(vT2), r=V(vL))
    for ks in range(8):
        b0 = R_O + 8*ks
        for k in range(8): e.v(f"v_mul_f32 v{b0+k}, v{b0+k}, v{L_}", w=V(b0+k), r=V(b0+k) + V(L_))
        for k in range(4): e.v(f"v_cvt_pk_bf16_f32 v{b0+k}, v{b0+2*k}, v{b0+2*k+1}", w=V(b0+k), r=V(b0+2*k, 2))
        e.bstore(b0, 4, vT2, sO, sT0 if ks < 4 else sT1, 1024*(ks % 4))
    e.wait(lg0=True); e.barrier()
    B0 = R_S
    e.v(f"v_lshlrev_b32 v{X4}, 3, v{q16}", w=V(X4), r=V(q16))
    e.v(f"v_add_u32 v{X4}, {MLB}, v{X4}", w=V(X4), r=V(X4))
    for w_ in range(4): e.dsr("ds_read_b64", B0 + 2*w_, 2, X4, 128*w_, 'ml')
    e.s(f"s_lshl_b32 s3, s{sWV}, 7", w=S(3))
    e.v(f"v_lshl_add_u32 v{X3}, v{gg}, 5, v{X3}", w=V(X3), r=V(gg) + V(X3))
    e.v(f"v_add_u32 v{X3}, s3, v{X3}", w=V(X3), r=V(X3))
    for w_ in range(4):
        for hh in range(2): e.dsr("ds_read_b128", R_F + 8*w_ + 4*hh, 4, X3, 8448*w_ + 16*hh, 'o9')
    e.wait(lg=['ml'])
    MM, LL = B0 + 8, B0 + 9
    e.v(f"v_max3_f32 v{MM}, v{B0}, v{B0+2}, v{B0+4}", w=V(MM), r=V(B0, 6))
    e.v(f"v_max_f32 v{MM}, v{MM}, v{B0+6}", w=V(MM), r=V(MM) + V(B0+6))
    for w_ in range(4): e.v(f"v_sub_f32 v{B0+2*w_}, v{B0+2*w_}, v{MM}", w=V(B0+2*w_), r=V(B0+2*w_) + V(MM))
    for w_ in range(4): e.t(f"v_exp_f32 v{B0+2*w_}, v{B0+2*w_}", w=V(B0+2*w_), r=V(B0+2*w_))
    e.v(f"v_mul_f32 v{LL}, v{B0}, v{B0+1}", w=V(LL), r=V(B0, 2))
    for w_ in range(1, 4): e.v(f"v_fmac_f32 v{LL}, v{B0+2*w_}, v{B0+2*w_+1}", w=V(LL), r=V(LL) + V(B0+2*w_, 2))
    e.t(f"v_rcp_f32 v{LL}, v{LL}", w=V(LL), r=V(LL))
    for w_ in range(4): e.v(f"v_mul_f32 v{B0+2*w_}, v{B0+2*w_}, v{LL}", w=V(B0+2*w_), r=V(B0+2*w_) + V(LL))
    e.wait(lg0=True)
    for k in range(8):
        e.v(f"v_mul_f32 v{R_F+k}, v{R_F+k}, v{B0}", w=V(R_F+k), r=V(R_F+k) + V(B0))
        for w_ in range(1, 4):
            e.v(f"v_fmac_f32 v{R_F+k}, v{R_F+8*w_+k}, v{B0+2*w_}", w=V(R_F+k), r=V(R_F+k) + V(R_F+8*w_+k) + V(B0+2*w_))
    for k in range(4): e.v(f"v_cvt_pk_bf16_f32 v{R_F+k}, v{R_F+2*k}, v{R_F+2*k+1}", w=V(R_F+k), r=V(R_F+2*k, 2))
    e.s(f"s_and_b32 s3, s{sB}, 1", w=S(3)); e.s("s_lshl_b32 s3, s3, 8", w=S(3))
    e.s(f"s_lshl_b32 s4, s{sWV}, 11", w=S(4)); e.s("s_add_u32 s3, s3, s4", w=S(3))
    e.v(f"v_lshlrev_b32 v{X3}, 9, v{gg}", w=V(X3), r=V(gg))
    e.v(f"v_lshl_add_u32 v{X3}, v{q16}, 4, v{X3}", w=V(X3), r=V(q16) + V(X3))
    e.v(f"v_add_u32 v{X3}, s3, v{X3}", w=V(X3), r=V(X3))
    e.bstore(R_F, 4, X3, sO, sT2, 0)
    e.label(f"{name}_end")
    e.raw("    s_endpgm")
    for j in resc:
        e.label(f"{name}_rs{j}")
        e.nop(16)
        BM, BM9, A1, A9 = T0, T0+2, T0+1, T0+3
        e.v(f"v_max_f32 v{BM}, v{BM}, v{M_}", w=V(BM), r=V(BM) + V(M_))
        e.v(f"v_max_f32 v{BM9}, v{BM9}, v{M9}", w=V(BM9), r=V(BM9) + V(M9))
        e.v(f"v_sub_f32 v{A1}, v{M_}, v{BM}", w=V(A1), r=V(M_) + V(BM))
        e.v(f"v_sub_f32 v{A9}, v{M9}, v{BM9}", w=V(A9), r=V(M9) + V(BM9))
        e.v(f"v_mul_f32 v{A1}, s{sC}, v{A1}", w=V(A1), r=V(A1)); e.v(f"v_mul_f32 v{A9}, s{sC}, v{A9}", w=V(A9), r=V(A9))
        e.t(f"v_exp_f32 v{A1}, v{A1}", w=V(A1), r=V(A1)); e.t(f"v_exp_f32 v{A9}, v{A9}", w=V(A9), r=V(A9))
        e.v(f"v_mov_b32 v{M_}, v{BM}", w=V(M_), r=V(BM)); e.v(f"v_mov_b32 v{M9}, v{BM9}", w=V(M9), r=V(BM9))
        e.v(f"v_mul_f32 v{MC}, s{sC}, v{BM}", w=V(MC), r=V(BM)); e.v(f"v_mul_f32 v{MC9}, s{sC}, v{BM9}", w=V(MC9), r=V(BM9))
        e.v(f"v_mul_f32 v{L_}, v{L_}, v{A1}", w=V(L_), r=V(L_) + V(A1)); e.v(f"v_mul_f32 v{L9}, v{L9}, v{A9}", w=V(L9), r=V(L9) + V(A9))
        for k in range(64): e.v(f"v_mul_f32 v{R_O+k}, v{R_O+k}, v{A1}", w=V(R_O+k), r=V(R_O+k) + V(A1))
        for k in range(32): e.v(f"v_mul_f32 v{R_O9+k}, v{R_O9+k}, v{A9}", w=V(R_O9+k), r=V(R_O9+k) + V(A9))
        e.nop(4)
        e.s(f"s_branch {name}_rb{j}")
    return e.text()
```

```python
from emit import *
from k1 import load_ptrs, mk_srd
NR = 8
LDS2 = 147456
ACC = 256
BB = 0
AF = 96
vAW = 200
vDW = 208
vL, vLO = 210, 211
T0 = 212
RB = 48
NV2 = 448
sW, sO, sOUT = 8, 12, 16
sWV, sBR, sRG, sNG, sWO, sLW = 28, 29, 30, 31, 34, 36
sB0, sB1, sB2, sT0 = 40, 41, 42, 43

def gen_k2(name):
    e = Em()
    e.label(name)
    e.s("s_cmp_ge_u32 s2, 240"); e.s(f"s_cbranch_scc1 {name}_end")
    load_ptrs(e)
    def vv(t, w, r=()): e.v(t, w=V(w), r=[x for a in r for x in V(a)])
    vv(f"v_and_b32 v{vL}, 63, v0", vL, [0])
    vv(f"v_lshrrev_b32 v{T0}, 6, v0", T0, [0])
    e.ins(f"v_readfirstlane_b32 s{sWV}, v{T0}", 'rdlane', w=S(sWV), r=V(T0))
    e.s("s_and_b32 s3, s2, 7"); e.s("s_lshr_b32 s4, s2, 3")
    e.s(f"s_lshr_b32 s{sBR}, s3, 2"); e.s("s_and_b32 s3, s3, 3"); e.s("s_mul_i32 s3, s3, 6")
    e.s("s_mul_i32 s5, s4, 205"); e.s("s_lshr_b32 s5, s5, 10")
    e.s(f"s_add_u32 s{sRG}, s3, s5"); e.s("s_mul_i32 s5, s5, 5"); e.s(f"s_sub_u32 s{sNG}, s4, s5")
    e.s(f"s_mul_i32 s3, s{sWV}, {1024*1280}", r=S(sWV)); e.s(f"s_lshl_b32 s4, s{sNG}, 8"); e.s(f"s_add_u32 s{sWO}, s3, s4")
    e.s(f"s_mul_i32 s{sLW}, s{sWV}, {NR*4096}")
    e.s(f"s_mul_i32 s3, s{sBR}, 72"); e.s(f"s_mul_i32 s4, s{sRG}, 3"); e.s("s_add_u32 s3, s3, s4"); e.s("s_lshl_b32 s3, s3, 18")
    e.s(f"s_lshl_b32 s4, s{sWV}, 16"); e.s(f"s_add_u32 s{sB0}, s3, s4")
    e.s(f"s_add_u32 s{sB1}, s{sB0}, {1<<18}"); e.s(f"s_add_u32 s{sB2}, s{sB0}, {2<<18}")
    A, Bq, C_, D_, R4, CC, DH, LOWC, SUB, X1, X2 = [T0 + i for i in range(11)]
    vv(f"v_lshrrev_b32 v{A}, 4, v{vL}", A, [vL]); vv(f"v_and_b32 v{Bq}, 15, v{vL}", Bq, [vL])
    vv(f"v_lshrrev_b32 v{D_}, 5, v{vL}", D_, [vL])
    e.s("s_movk_i32 s3, 1280", w=S(3))
    vv(f"v_mul_lo_u32 v{X1}, v{A}, s3", X1, [A])
    for ee in range(2):
        vv(f"v_lshlrev_b32 v{C_}, 2, v{A}", C_, [A]); vv(f"v_xor_b32 v{C_}, v{C_}, v{Bq}", C_, [C_, Bq])
        if ee: vv(f"v_xor_b32 v{C_}, 2, v{C_}", C_, [C_])
        vv(f"v_lshl_add_u32 v{vDW+ee}, v{C_}, 4, v{X1}", vDW+ee, [C_, X1])
    vv(f"v_lshlrev_b32 v{vLO}, 4, v{vL}", vLO, [vL])
    e.wait(lg0=True)
    e.s(f"s_cmp_eq_u32 s{sBR}, 0")
    mk_srd(e, sW, 72, 82, 5242880); mk_srd(e, sO, 86, None, 37748736); mk_srd(e, sOUT, 84, None, 5898240)
    def issue(ks):
        if ks >= 64: return
        sl = ks % NR
        for u in range(4):
            e.s(f"s_add_u32 s{sT0}, s{sWO}, {(ks*16 + 4*u)*1280}", w=S(sT0))
            e.s(f"s_add_u32 m0, s{sLW}, {sl*4096 + u*1024}", w=[('m0', 0)])
            e.dma(vDW + (u & 1), sW, sT0, 0, ('w', ks))
        if ks % 4 == 0 and ks > 0:
            for s_ in (sB0, sB1, sB2): e.s(f"s_add_u32 s{s_}, s{s_}, 4096", w=S(s_))
        for rt, s_ in enumerate((sB0, sB1, sB2)):
            e.bload(BB + 12*sl + 4*rt, 4, vLO, sO, s_, 1024*(ks % 4), ('b', ks))
    for ks in range(NR - 1): issue(ks)
    vv(f"v_lshrrev_b32 v{R4}, 2, v{Bq}", R4, [Bq]); vv(f"v_and_b32 v{CC}, 3, v{vL}", CC, [vL]); vv(f"v_and_b32 v{DH}, 1, v{A}", DH, [A])
    vv(f"v_and_b32 v{LOWC}, 1, v{CC}", LOWC, [CC]); vv(f"v_lshl_add_u32 v{LOWC}, v{DH}, 1, v{LOWC}", LOWC, [DH, LOWC])
    vv(f"v_lshrrev_b32 v{SUB}, 1, v{CC}", SUB, [CC]); vv(f"v_lshlrev_b32 v{SUB}, 3, v{SUB}", SUB, [SUB])
    vv(f"v_add_u32 v{SUB}, s{sLW}, v{SUB}", SUB, [SUB])
    for t in range(4):
        vv(f"v_xor_b32 v{X1}, {t}, v{R4}", X1, [R4])
        for ee in range(2):
            d = vAW + 2*t + ee
            vv(f"v_xor_b32 v{X2}, {2*ee}, v{LOWC}", X2, [LOWC])
            vv(f"v_lshl_add_u32 v{X2}, v{X1}, 2, v{X2}", X2, [X1, X2])
            vv(f"v_lshl_add_u32 v{X2}, v{X2}, 4, v{SUB}", X2, [X2, SUB])
            vv(f"v_lshl_add_u32 v{X2}, v{R4}, 8, v{X2}", X2, [R4, X2])
            vv(f"v_lshl_add_u32 v{d}, v{D_}, 11, v{X2}", d, [D_, X2])
            if ee: vv(f"v_add_u32 v{d}, 1024, v{d}", d, [d])
    def ard(ks):
        if ks >= 64: return
        e.wait(vm=[('w', ks)])
        for t in range(4):
            for ee in range(2):
                e.dsr("ds_read_b64_tr_b16", AF + 16*(ks % 2) + 4*t + 2*ee, 2, vAW + 2*t + ee, (ks % NR)*4096, ('a', ks, t))
    ard(0)
    for ks in range(64):
        ard(ks + 1)
        issue(ks + NR - 1)
        e.wait(vm=[('b', ks)])
        for t in range(4):
            e.wait(lg=[('a', ks, t)])
            for rt in range(3):
                d = ACC + 16*(rt*4 + t)
                e.mfma32(d, AF + 16*(ks % 2) + 4*t, BB + 12*(ks % NR) + 4*rt, None if ks == 0 else d)
    e.wait(lg0=True, vm0=True); e.barrier(); e.nop(16)
    AD = T0
    for nt in range(4):
        e.s(f"s_cmp_eq_u32 s{sWV}, {nt}"); e.s(f"s_cbranch_scc1 {name}_sk{nt}")
        e.s(f"s_sub_u32 s3, s{sWV}, {nt+1}", w=S(3)); e.s("s_and_b32 s3, s3, 3", w=S(3))
        e.s(f"s_mul_i32 s3, s3, 12288", w=S(3)); e.s(f"s_add_u32 s3, s3, {nt*36864}", w=S(3))
        vv(f"v_add_u32 v{AD}, s3, v{vLO}", AD, [vLO])
        for rt in range(3):
            for q4 in range(4):
                e.dsw("ds_write_b128", AD, ACC + 16*(rt*4 + nt) + 4*q4, 4, rt*4096 + q4*1024)
        e.wait(lg0=True)
        e.label(f"{name}_sk{nt}")
        e.nop(2)
    e.wait(lg0=True); e.barrier()
    OWN = BB
    for nt in range(4):
        e.s(f"s_cmp_lg_u32 s{sWV}, {nt}"); e.s(f"s_cbranch_scc1 {name}_mv{nt}")
        for rt in range(3):
            for k in range(16): vv(f"v_accvgpr_read_b32 v{OWN+16*rt+k}, {vr(ACC+16*(rt*4+nt)+k)}", OWN+16*rt+k, [ACC+16*(rt*4+nt)+k])
        e.label(f"{name}_mv{nt}")
        e.nop(2)
    e.s(f"s_mul_i32 s3, s{sWV}, 36864", w=S(3))
    vv(f"v_add_u32 v{AD}, s3, v{vLO}", AD, [vLO])
    for sl in range(3):
        for rt in range(3):
            for q4 in range(4):
                e.dsr("ds_read_b128", RB + 48*sl + 16*rt + 4*q4, 4, AD, sl*12288 + rt*4096 + q4*1024, ('r', sl))
        e.wait(lg0=True)
    for k in range(48):
        vv(f"v_add_f32 v{OWN+k}, v{OWN+k}, v{RB+k}", OWN+k, [OWN+k, RB+k])
        vv(f"v_add_f32 v{RB+48+k}, v{RB+48+k}, v{RB+96+k}", RB+48+k, [RB+48+k, RB+96+k])
    for k in range(48): vv(f"v_add_f32 v{OWN+k}, v{OWN+k}, v{RB+48+k}", OWN+k, [OWN+k, RB+48+k])
    for k in range(24): vv(f"v_cvt_pk_bf16_f32 v{OWN+k}, v{OWN+2*k}, v{OWN+2*k+1}", OWN+k, [OWN+2*k, OWN+2*k+1])
    Q32, ROW, COL = T0+1, T0+2, T0+3
    vv(f"v_and_b32 v{Q32}, 31, v{vL}", Q32, [vL])
    vv(f"v_lshrrev_b32 v{COL}, 5, v{vL}", COL, [vL]); vv(f"v_lshlrev_b32 v{COL}, 4, v{COL}", COL, [COL])
    e.s(f"s_mul_i32 s3, s{sBR}, 1280", w=S(3)); e.s(f"s_lshl_b32 s4, s{sNG}, 8", w=S(4)); e.s("s_add_u32 s3, s3, s4", w=S(3))
    e.s(f"s_lshl_b32 s4, s{sWV}, 6", w=S(4)); e.s("s_add_u32 s3, s3, s4", w=S(3))
    vv(f"v_add_u32 v{COL}, s3, v{COL}", COL, [COL])
    TL = T0 + 4
    vv(f"v_lshrrev_b32 v{TL}, 4, v{Q32}", TL, [Q32]); vv(f"v_mul_u32_u24 v{TL}, 144, v{TL}", TL, [TL])
    vv(f"v_and_b32 v{ROW}, 15, v{Q32}", ROW, [Q32]); vv(f"v_add_u32 v{TL}, v{TL}, v{ROW}", TL, [TL, ROW])
    e.s("s_movk_i32 s7, 2560", w=S(7))
    for rt in range(3):
        e.s(f"s_mul_i32 s3, s{sRG}, 3", w=S(3)); e.s(f"s_add_u32 s3, s3, {rt}", w=S(3))
        e.s("s_lshr_b32 s4, s3, 2", w=S(4)); e.s("s_mul_i32 s4, s4, 144", w=S(4)); e.s("s_and_b32 s5, s3, 3", w=S(5))
        e.s("s_lshl_b32 s5, s5, 5", w=S(5)); e.s("s_add_u32 s4, s4, s5", w=S(4))
        e.s("s_sub_u32 s5, s3, 64", w=S(5)); e.s("s_mul_i32 s5, s5, 288", w=S(5)); e.s("s_add_u32 s5, s5, 128", w=S(5))
        e.s("s_cmp_lt_u32 s3, 64"); e.s("s_cselect_b32 s4, s4, s5", w=S(4)); e.s("s_cselect_b64 vcc, -1, 0", w=[('vcc', 0)])
        e.nop(1)
        e.v(f"v_cndmask_b32 v{ROW}, v{TL}, v{Q32}, vcc", w=V(ROW), r=V(TL) + V(Q32))
        vv(f"v_add_u32 v{ROW}, s4, v{ROW}", ROW, [ROW])
        vv(f"v_mul_lo_u32 v{ROW}, v{ROW}, s7", ROW, [ROW])
        vv(f"v_add_u32 v{T0+5+rt}, v{ROW}, v{COL}", T0+5+rt, [ROW, COL])
        for s1 in range(2): e.bstore(OWN + 8*rt + 4*s1, 4, T0+5+rt, sOUT, "0", 32*s1)
    e.label(f"{name}_end")
    e.raw("    s_endpgm")
    return e.text()
```

```python
import sys
sys.path.insert(0, 'gen')
import k1, k2
N = "concat_heads__gqa_block_cached__gqa_block_cached__near_ridge"
ref = open(f"cdna_kernels/{N}.s.ref").read().split("\n")
hdr = [l for l in ref if l.startswith(";") and "@launch" not in l and "Override" not in l and "grid=ceil" not in l]
def kd(name, nv, acc):
    return f""".p2align 6
.amdhsa_kernel {name}
  .amdhsa_next_free_vgpr {nv}
  .amdhsa_next_free_sgpr 102
  .amdhsa_accum_offset {acc}
  .amdhsa_group_segment_fixed_size 0
  .amdhsa_kernarg_size 104
  .amdhsa_user_sgpr_count 2
  .amdhsa_user_sgpr_kernarg_segment_ptr 1
  .amdhsa_system_sgpr_workgroup_id_x 1
.end_amdhsa_kernel
"""
K1 = N + "_kernel"; K2 = "oproj_kernel"
out = "\n".join(hdr) + "\n"
out += f"; @launch kernel={K1} grid=(1024,1,1) block=(256,1,1) lds={k1.LDS1}\n"
out += f"; @launch kernel={K2} grid=(240,1,1) block=(256,1,1) lds={k2.LDS2}\n"
out += '.amdgcn_target "amdgcn-amd-amdhsa--gfx950"\n.text\n'
for nm, g in ((K1, k1.gen_k1), (K2, k2.gen_k2)):
    out += f".globl {nm}\n.p2align 8\n.type {nm},@function\n" + g(nm)
out += '.section .rodata,"a"\n' + kd(K1, 256, 256) + kd(K2, k2.NV2, 256)
dst = sys.argv[1] if len(sys.argv) > 1 else f"cdna_kernels/{N}.s"
open(dst, "w").write(out)
print("wrote", dst, len(out))
```

```python
from emit import *
from k1 import load_ptrs, mk_srd, XF, WSZ
def gen_k0(name):
    e = Em()
    e.label(name)
    e.s("s_cmp_ge_u32 s2, 400"); e.s(f"s_cbranch_scc1 {name}_end")
    load_ptrs(e)
    def vv(t, w, r=()): e.v(t, w=V(w), r=[x for a in r for x in V(a)])
    vv("v_and_b32 v1, 63, v0", 1, [0]); vv("v_lshrrev_b32 v2, 6, v0", 2, [0])
    e.ins("v_readfirstlane_b32 s28, v2", 'rdlane', w=S(28), r=V(2))
    e.s("s_lshl_b32 s3, s2, 2"); e.s("s_add_u32 s3, s3, s28", r=S(28))
    e.s("s_mul_i32 s4, s3, 6554"); e.s("s_lshr_b32 s4, s4, 16")
    e.s("s_mul_i32 s5, s4, 10"); e.s("s_sub_u32 s5, s3, s5")
    e.s("s_mul_i32 s6, s4, 13108"); e.s("s_lshr_b32 s6, s6, 16")
    e.s("s_mul_i32 s7, s6, 5"); e.s("s_sub_u32 s7, s4, s7")
    e.s("s_lshr_b32 s29, s6, 4"); e.s("s_and_b32 s6, s6, 15")
    e.s("s_mul_i32 s30, s6, 184320"); e.s("s_lshl_b32 s31, s5, 7"); e.s("s_add_u32 s30, s30, s31")
    e.s("s_mul_i32 s31, s7, 40960"); e.s("s_add_u32 s30, s30, s31")
    e.s("s_lshl_b32 s31, s3, 12"); e.s(f"s_add_u32 s31, s31, {XF}")
    e.s("s_cmp_eq_u32 s7, 4"); e.s("s_cselect_b32 s32, 15, 31", w=S(32)); e.s("s_movk_i32 s33, 1280", w=S(33))
    vv("v_and_b32 v2, s32, v1", 2, [1]); vv("v_mul_lo_u32 v2, v2, s33", 2, [2])
    vv("v_lshrrev_b32 v3, 5, v1", 3, [1]); vv("v_lshl_add_u32 v2, v3, 5, v2", 2, [3, 2])
    vv("v_lshlrev_b32 v3, 4, v1", 3, [1])
    e.wait(lg0=True)
    e.s("s_cmp_eq_u32 s29, 0")
    mk_srd(e, 8, 64, 74, 2949120); mk_srd(e, 12, 86, None, WSZ)
    for s in range(4): e.bload(4 + 4*s, 4, 2, 8, 30, 64*(s//2) + 16*(s%2), ('x', s))
    for s in range(4):
        e.wait(vm=[('x', s)])
        e.bstore(4 + 4*s, 4, 3, 12, 31, 1024*s)
    e.label(f"{name}_end")
    e.raw("    s_endpgm")
    return e.text()
```

```python
from emit import *
import math, struct
def f2u(f): return struct.unpack('<I', struct.pack('<f', f))[0]
CSC = math.log2(math.e) / math.sqrt(128.0)
THR = 8.0 / CSC
SLOT = 16384; NSLOT = 4
Q9B = 65536
MLB = 65536 + 4096
LDS1 = 65536 + 4096 + 1024
R_O, R_S, R_Q, R_F, R_O9, R_T = 0, 64, 96, 128, 160, 192
R_QA = 128
S9, P9 = 208, 212
M_, L_, M9, L9, MC, MC9 = 214, 215, 216, 217, 218, 219
T0 = 220
vAW = 208
vKA, vVA, vK9, vV9, vDK, vDV, vDW, vX, vX9 = 226, 234, 238, 242, 243, 247, 249, 251, 252
vL, vT1, vT2 = 253, 254, 255
sX, sK, sV, sW, sO = 8, 12, 16, 20, 24
sWV, sBR, sB, sH, sXO, sWO, sKO, sLW, sC, sTH = 28, 29, 30, 31, 32, 34, 35, 36, 37, 38
sT0, sT1, sT2 = 40, 41, 42
KVFL = " nt"
XF = 37748736
WSZ = XF + 6553600

def load_ptrs(e):
    e.s("s_load_dwordx16 s[64:79], s[0:1], 0", w=S(64, 16))
    e.s("s_load_dwordx4 s[80:83], s[0:1], 64", w=S(80, 4))
    e.s("s_load_dwordx2 s[84:85], s[0:1], 80", w=S(84, 2))
    e.s("s_load_dwordx2 s[86:87], s[0:1], 96", w=S(86, 2))

def mk_srd(e, d, a, b, size):
    if b is None:
        e.s(f"s_mov_b32 s{d}, s{a}"); e.s(f"s_and_b32 s{d+1}, s{a+1}, 0xffff")
    else:
        e.s(f"s_cselect_b32 s{d}, s{a}, s{b}"); e.s(f"s_cselect_b32 s{d+1}, s{a+1}, s{b+1}")
    e.s(f"s_mov_b32 s{d+2}, {size}"); e.s(f"s_mov_b32 s{d+3}, 0x00020000")

def gen_k1(name):
    e = Em()
    e.label(name)
    e.s("s_cmp_ge_u32 s2, 1024"); e.s(f"s_cbranch_scc1 {name}_end")
    load_ptrs(e)
    e.v(f"v_and_b32 v{vL}, 63, v0", w=V(vL), r=V(0))
    e.v(f"v_lshrrev_b32 v{vT1}, 6, v0", w=V(vT1), r=V(0))
    e.ins(f"v_readfirstlane_b32 s{sWV}, v{vT1}", 'rdlane', w=S(sWV), r=V(vT1))
    e.s("s_and_b32 s3, s2, 7"); e.s("s_lshr_b32 s4, s2, 3")
    e.s(f"s_lshr_b32 s{sBR}, s3, 2")
    e.s("s_and_b32 s3, s3, 3"); e.s("s_lshl_b32 s3, s3, 3"); e.s("s_and_b32 s5, s4, 7")
    e.s(f"s_add_u32 s{sH}, s3, s5"); e.s(f"s_lshr_b32 s{sB}, s4, 3")
    e.s(f"s_mov_b32 s{sC}, {f2u(CSC)}"); e.s(f"s_mov_b32 s{sTH}, {f2u(THR)}")
    e.s(f"s_lshl_b32 s3, s{sBR}, 4"); e.s(f"s_add_u32 s3, s3, s{sB}"); e.s("s_mul_i32 s3, s3, 204800"); e.s(f"s_add_u32 s{sXO+1}, s3, {XF + 4*40960}")
    e.s(f"s_mul_i32 s4, s{sWV}, 40960", r=S(sWV)); e.s("s_add_u32 s3, s3, s4"); e.s(f"s_add_u32 s{sXO}, s3, {XF}")
    e.s(f"s_lshl_b32 s{sLW}, s{sWV}, 12", r=S(sWV))
    e.s(f"s_lshl_b32 s3, s{sWV}, 17"); e.s(f"s_lshl_b32 s4, s{sH}, 8"); e.s(f"s_add_u32 s{sWO}, s3, s4")
    e.s(f"s_lshl_b32 s3, s{sB}, 5"); e.s(f"s_add_u32 s3, s3, s{sH}"); e.s("s_lshl_b32 s3, s3, 17")
    e.s(f"s_add_u32 s{sKO}, s3, s{sLW}")
    A, Bq, C_, D_, E_, F_ = T0, T0+1, T0+2, T0+3, T0+4, T0+5
    def vv(t, w, r=()): e.v(t, w=V(w), r=[x for a in r for x in V(a)])
    vv(f"v_lshrrev_b32 v{A}, 4, v{vL}", A, [vL])
    vv(f"v_and_b32 v{Bq}, 15, v{vL}", Bq, [vL])
    for u in range(4):
        vv(f"v_add_u32 v{C_}, {4*u}, v{A}", C_, [A])
        vv(f"v_xor_b32 v{C_}, v{C_}, v{Bq}", C_, [C_, Bq])
        vv(f"v_lshlrev_b32 v{C_}, 4, v{C_}", C_, [C_])
        vv(f"v_lshl_add_u32 v{vDK+u}, v{A}, 8, v{C_}", vDK+u, [A, C_])
    for ee in range(2):
        vv(f"v_lshlrev_b32 v{C_}, 2, v{A}", C_, [A])
        vv(f"v_xor_b32 v{C_}, v{C_}, v{Bq}", C_, [C_, Bq])
        if ee: vv(f"v_xor_b32 v{C_}, 2, v{C_}", C_, [C_])
        vv(f"v_lshlrev_b32 v{C_}, 4, v{C_}", C_, [C_])
        vv(f"v_lshl_add_u32 v{vDV+ee}, v{A}, 8, v{C_}", vDV+ee, [A, C_])
        vv(f"v_lshl_add_u32 v{vDW+ee}, v{A}, 13, v{C_}", vDW+ee, [A, C_])
    vv(f"v_and_b32 v{C_}, 31, v{vL}", C_, [vL])
    vv(f"v_lshrrev_b32 v{D_}, 5, v{vL}", D_, [vL])
    vv(f"v_lshlrev_b32 v{vX}, 4, v{vL}", vX, [vL])
    e.wait(lg0=True)
    e.s(f"s_cmp_eq_u32 s{sBR}, 0")
    mk_srd(e, sK, 66, 76, 67108864); mk_srd(e, sV, 68, 78, 67108864)
    mk_srd(e, sW, 70, 80, 5242880); mk_srd(e, sO, 86, None, WSZ)

    def issue_dma(t):
        if t > 25: return
        base = (t % NSLOT) * SLOT
        if t < 10:
            for u in range(4):
                e.s(f"s_add_u32 s{sT0}, s{sWO}, {t*524288 + u*32768}", w=S(sT0))
                e.s(f"s_add_u32 m0, s{sLW}, {base + u*1024}", w=[('m0', 0)])
                e.dma(vDW + (u & 1), sW, sT0, 0, ('slot', t))
        else:
            j = (t - 10) // 2; isv = (t - 10) % 2
            e.s(f"s_add_u32 s{sT0}, s{sKO}, {j*16384}", w=S(sT0))
            e.s(f"s_add_u32 m0, s{sLW}, {base}", w=[('m0', 0)])
            for u in range(4):
                if isv: e.dma(vDV + (u & 1), sV, sT0, u*1024, ('slot', t), KVFL)
                else: e.dma(vDK + u, sK, sT0, u*1024, ('slot', t), KVFL)
    XB = [0, 32, 64]
    def issue_x(c):
        if c > 9: return
        e.s(f"s_add_u32 s{sT1}, s{sXO}, {c*4096}", w=S(sT1))
        e.s(f"s_add_u32 s{sT2}, s{sXO+1}, {c*4096}", w=S(sT2))
        b0 = XB[c % 3]
        for s in range(4): e.bload(b0 + 4*s, 4, vX, sO, sT1, 1024*s, ('x', c))
        for s in range(4): e.bload(b0 + 16 + 4*s, 4, vX, sO, sT2, 1024*s, ('x', c))
    issue_x(0); issue_dma(0); issue_x(1); issue_dma(1); issue_dma(2)
    R4, CC, DH = E_, F_, vT1
    vv(f"v_lshrrev_b32 v{R4}, 2, v{Bq}", R4, [Bq])
    vv(f"v_and_b32 v{CC}, 3, v{vL}", CC, [vL])
    vv(f"v_and_b32 v{DH}, 1, v{A}", DH, [A])
    LOWC, SUB = vKA, vKA + 1
    vv(f"v_and_b32 v{LOWC}, 1, v{CC}", LOWC, [CC])
    vv(f"v_lshl_add_u32 v{LOWC}, v{DH}, 1, v{LOWC}", LOWC, [DH, LOWC])
    vv(f"v_lshrrev_b32 v{SUB}, 1, v{CC}", SUB, [CC])
    vv(f"v_lshlrev_b32 v{SUB}, 3, v{SUB}", SUB, [SUB])
    X1, X2 = vKA + 2, vKA + 3
    for u in range(4):
        e.s(f"s_add_u32 s3, s{sWV}, {u}", w=S(3)); e.s("s_and_b32 s3, s3, 3", w=S(3))
        vv(f"v_xor_b32 v{X1}, s3, v{R4}", X1, [R4])
        for ee in range(2):
            d = vAW + 2*u + ee
            vv(f"v_xor_b32 v{X2}, {2*ee}, v{LOWC}", X2, [LOWC])
            vv(f"v_lshl_add_u32 v{X2}, v{X1}, 2, v{X2}", X2, [X1, X2])
            vv(f"v_lshl_add_u32 v{X2}, v{X2}, 4, v{SUB}", X2, [X2, SUB])
            vv(f"v_lshl_add_u32 v{X2}, v{R4}, 8, v{X2}", X2, [R4, X2])
            vv(f"v_lshl_add_u32 v{d}, v{D_}, 13, v{X2}", d, [D_, X2])
            if ee: vv(f"v_add_u32 v{d}, 1024, v{d}", d, [d])
    for t in range(4):
        vv(f"v_xor_b32 v{X1}, {t}, v{R4}", X1, [R4])
        vv(f"v_lshlrev_b32 v{X2}, 1, v{D_}", X2, [D_])
        vv(f"v_xor_b32 v{X2}, v{X2}, v{LOWC}", X2, [X2, LOWC])
        vv(f"v_lshl_add_u32 v{X2}, v{X1}, 2, v{X2}", X2, [X1, X2])
        vv(f"v_lshl_add_u32 v{X2}, v{X2}, 4, v{SUB}", X2, [X2, SUB])
        vv(f"v_lshl_add_u32 v{X2}, v{R4}, 8, v{X2}", X2, [R4, X2])
        vv(f"v_lshl_add_u32 v{vVA+t}, v{D_}, 10, v{X2}", vVA+t, [D_, X2])
    vv(f"v_lshrrev_b32 v{X1}, 1, v{CC}", X1, [CC])
    vv(f"v_lshl_or_b32 v{X1}, v{R4}, 2, v{X1}", X1, [R4, X1])
    vv(f"v_lshlrev_b32 v{X2}, 1, v{DH}", X2, [DH])
    vv(f"v_xor_b32 v{X1}, v{X1}, v{X2}", X1, [X1, X2])
    vv(f"v_and_b32 v{X2}, 1, v{CC}", X2, [CC])
    vv(f"v_lshlrev_b32 v{X2}, 3, v{X2}", X2, [X2])
    vv(f"v_lshl_add_u32 v{X1}, v{X1}, 4, v{X2}", X1, [X1, X2])
    vv(f"v_lshl_add_u32 v{X1}, v{R4}, 8, v{X1}", X1, [R4, X1])
    vv(f"v_lshl_add_u32 v{X1}, v{A}, 10, v{X1}", X1, [A, X1])
    vv(f"v_add_u32 v{vV9}, s{sLW}, v{X1}", vV9, [X1])
    vv(f"v_xor_b32 v{X1}, v{A}, v{Bq}", X1, [A, Bq])
    vv(f"v_lshlrev_b32 v{X1}, 4, v{X1}", X1, [X1])
    vv(f"v_lshl_add_u32 v{X1}, v{Bq}, 8, v{X1}", X1, [Bq, X1])
    for s in range(4): vv(f"v_xor_b32 v{vK9+s}, {64*s}, v{X1}", vK9+s, [X1])
    e.s(f"s_lshl_b32 s3, s{sWV}, 2", w=S(3))
    vv(f"v_add_u32 v{X1}, s3, v{D_}", X1, [D_])
    vv(f"v_xor_b32 v{X1}, v{X1}, v{Bq}", X1, [X1, Bq])
    vv(f"v_lshlrev_b32 v{X1}, 4, v{X1}", X1, [X1])
    vv(f"v_lshl_add_u32 v{vT2}, v{Bq}, 8, v{X1}", vT2, [Bq, X1])
    vv(f"v_xor_b32 v{vT1}, v{D_}, v{Bq}", vT1, [D_, Bq])
    vv(f"v_lshlrev_b32 v{vT1}, 4, v{vT1}", vT1, [vT1])
    vv(f"v_lshl_add_u32 v{vT1}, v{C_}, 8, v{vT1}", vT1, [C_, vT1])
    for u in range(4):
        e.s(f"s_add_u32 s3, s{sWV}, {u}", w=S(3)); e.s("s_and_b32 s3, s3, 3", w=S(3)); e.s("s_lshl_b32 s3, s3, 6", w=S(3))
        vv(f"v_xor_b32 v{vKA+2*u}, s3, v{vT1}", vKA+2*u, [vT1])
        vv(f"v_xor_b32 v{vKA+2*u+1}, 32, v{vKA+2*u}", vKA+2*u+1, [vKA+2*u])

    def step_sync(t, extra_vm=()):
        e.wait(vm=[('slot', t)] + list(extra_vm), lg0=True)
        e.barrier()
        issue_dma(t + 3)
    for c in range(10):
        step_sync(c, [('x', c)])
        base = (c % NSLOT) * SLOT
        xb = XB[c % 3]
        def rd(s):
            for u in range(4):
                d = R_Q + (s % 2) * 16 + 4*u
                for ee in range(2):
                    e.dsr("ds_read_b64_tr_b16", d + 2*ee, 2, vAW + 2*u + ee, base + 2048*s, ('a', c, s, u))
        rd(0); rd(1)
        issue_x(c + 2)
        for s in range(4):
            first = (c == 0 and s == 0)
            for u in range(4):
                e.wait(lg=[('a', c, s, u)])
                a = R_Q + (s % 2) * 16 + 4*u
                e.mfma32(R_QA + 16*u, a, xb + 4*s, None if first else R_QA + 16*u)
                if u == 0: e.mfma32(R_T, a, xb + 16 + 4*s, None if first else R_T)
            if s + 2 < 4: rd(s + 2)
    for k in range(8):
        e.v(f"v_cvt_pk_bf16_f32 v{R_T+k}, v{R_T+2*k}, v{R_T+2*k+1}", w=V(R_T+k), r=V(R_T+2*k, 2))
    e.v(f"v_add_u32 v{vT2}, {Q9B}, v{vT2}", w=V(vT2), r=V(vT2))
    e.v(f"v_xor_b32 v{vT1}, 32, v{vT2}", w=V(vT1), r=V(vT2))
    e.dsw("ds_write_b128", vT2, R_T, 4, 0); e.dsw("ds_write_b128", vT1, R_T + 4, 4, 0)
    for k in range(32):
        e.v(f"v_cvt_pk_bf16_f32 v{R_Q+k}, v{R_QA+2*k}, v{R_QA+2*k+1}", w=V(R_Q+k), r=V(R_QA+2*k, 2))
    resc = []
    for j in range(8):
        tK, tV = 10 + 2*j, 11 + 2*j
        bK, bV = (tK % NSLOT) * SLOT, (tV % NSLOT) * SLOT
        step_sync(tK)
        if j == 0:
            for s in range(4):
                e.v(f"v_add_u32 v{T0+s}, {Q9B}, v{vK9+s}", w=V(T0+s), r=V(vK9+s))
                e.dsr("ds_read_b128", R_T + 4*s, 4, T0 + s, 0, 'q9')
                e.v(f"v_add_u32 v{vK9+s}, s{sLW}, v{vK9+s}", w=V(vK9+s), r=V(vK9+s))
        items = [('m', kt, s) for kt in range(2) for s in range(8)] + [('t', 0, s) for s in range(4)]
        def krd(i):
            k, kt, s = items[i]
            d = R_F + 4*(i % 8)
            if k == 'm': e.dsr("ds_read_b128", d, 4, vKA + s, bK + 8192*kt, ('k', j, i))
            else: e.dsr("ds_read_b128", d, 4, vK9 + s, bK, ('k', j, i))
        for i in range(8): krd(i)
        for i in range(20):
            k, kt, s = items[i]
            e.wait(lg=[('k', j, i)] + (['q9'] if k == 't' else []))
            a = R_F + 4*(i % 8)
            if k == 'm': e.mfma32(R_S + 16*kt, a, R_Q + 4*s, None if s == 0 else R_S + 16*kt)
            else: e.mfma16(S9, a, R_T + 4*s, None if s == 0 else S9)
            if i + 8 < 20: krd(i + 8)
        step_sync(tV)
        vitems = [('m', t, s) for s in range(4) for t in range(4)] + [('t', t9, 0) for t9 in range(0, 8, 2)]
        def vrd(i):
            k, t, s = vitems[i]
            d = R_F + 4*(i % 8)
            if k == 'm':
                for ee in range(2):
                    e.dsr("ds_read_b64_tr_b16", d + 2*ee, 2, vVA + t, bV + 4096*s + 2048*ee, ('v', j, i))
            else:
                for ee in range(2):
                    tt = T0 + 4 + ee
                    e.v(f"v_xor_b32 v{tt}, {32*(t+ee)}, v{vV9}", w=V(tt), r=V(vV9))
                    e.dsr("ds_read_b64_tr_b16", d + 2*ee, 2, tt, bV, ('v', j, i))
        for i in range(7): vrd(i)
        BM, B2, BM9, B29 = T0, T0+1, T0+2, T0+3
        e.v(f"v_max3_f32 v{BM}, v{R_S}, v{R_S+1}, v{R_S+2}", w=V(BM), r=V(R_S, 3))
        e.v(f"v_max3_f32 v{B2}, v{R_S+3}, v{R_S+4}, v{R_S+5}", w=V(B2), r=V(R_S+3, 3))
        k = 6
        tog = 0
        while k < 32:
            d = BM if tog == 0 else B2
            e.v(f"v_max3_f32 v{d}, v{d}, v{R_S+k}, v{R_S+k+1}", w=V(d), r=V(d) + V(R_S+k, 2)); k += 2; tog ^= 1
        e.v(f"v_max3_f32 v{BM9}, v{S9}, v{S9+1}, v{S9+2}", w=V(BM9), r=V(S9, 3))
        e.v(f"v_max_f32 v{BM}, v{BM}, v{B2}", w=V(BM), r=V(BM) + V(B2))
        e.v(f"v_max_f32 v{BM9}, v{BM9}, v{S9+3}", w=V(BM9), r=V(BM9) + V(S9+3))
        e.v(f"v_mov_b32 v{B2}, v{BM}", w=V(B2), r=V(BM))
        e.v(f"v_mov_b32 v{B29}, v{BM9}", w=V(B29), r=V(BM9))
        e.ins(f"v_permlane32_swap_b32 v{BM}, v{B2}", 'perm', w=V(BM) + V(B2), r=V(BM) + V(B2))
        e.ins(f"v_permlane32_swap_b32 v{BM9}, v{B29}", 'perm', w=V(BM9) + V(B29), r=V(BM9) + V(B29))
        e.v(f"v_max_f32 v{BM}, v{BM}, v{B2}", w=V(BM), r=V(BM) + V(B2))
        e.v(f"v_max_f32 v{BM9}, v{BM9}, v{B29}", w=V(BM9), r=V(BM9) + V(B29))
        e.v(f"v_mov_b32 v{B29}, v{BM9}", w=V(B29), r=V(BM9))
        e.ins(f"v_permlane16_swap_b32 v{BM9}, v{B29}", 'perm', w=V(BM9) + V(B29), r=V(BM9) + V(B29))
        e.v(f"v_max_f32 v{BM9}, v{BM9}, v{B29}", w=V(BM9), r=V(BM9) + V(B29))
        if j == 0:
            e.v(f"v_mov_b32 v{M_}, v{BM}", w=V(M_), r=V(BM)); e.v(f"v_mov_b32 v{M9}, v{BM9}", w=V(M9), r=V(BM9))
            e.v(f"v_mul_f32 v{MC}, s{sC}, v{BM}", w=V(MC), r=V(BM)); e.v(f"v_mul_f32 v{MC9}, s{sC}, v{BM9}", w=V(MC9), r=V(BM9))
        else:
            e.v(f"v_sub_f32 v{B2}, v{BM}, v{M_}", w=V(B2), r=V(BM) + V(M_))
            e.v(f"v_sub_f32 v{B29}, v{BM9}, v{M9}", w=V(B29), r=V(BM9) + V(M9))
            e.v(f"v_max_f32 v{B2}, v{B2}, v{B29}", w=V(B2), r=V(B2) + V(B29))
            e.v(f"v_cmp_lt_f32 vcc, s{sTH}, v{B2}", w=[('vcc', 0)], r=V(B2))
            e.nop(4)
            e.s(f"s_cbranch_vccnz {name}_rs{j}")
            e.label(f"{name}_rb{j}")
            resc.append(j)
        LA, LB = T0, T0+1
        def expo(r, mc):
            e.v(f"v_fma_f32 v{r}, v{r}, s{sC}, -v{mc}", w=V(r), r=V(r) + V(mc))
        for k in range(4): expo(S9 + k, MC9)
        for k in range(4): e.t(f"v_exp_f32 v{S9+k}, v{S9+k}", w=V(S9+k), r=V(S9+k))
        for g8 in range(4):
            b0 = R_S + 8*g8
            for k in range(8): expo(b0 + k, MC)
            if g8 == 0:
                e.v(f"v_add_f32 v{B29}, v{S9}, v{S9+1}", w=V(B29), r=V(S9, 2))
                e.v(f"v_add_f32 v{BM9}, v{S9+2}, v{S9+3}", w=V(BM9), r=V(S9+2, 2))
                e.v(f"v_cvt_pk_bf16_f32 v{P9}, v{S9}, v{S9+1}", w=V(P9), r=V(S9, 2))
                e.v(f"v_cvt_pk_bf16_f32 v{P9+1}, v{S9+2}, v{S9+3}", w=V(P9+1), r=V(S9+2, 2))
                if j == 0: e.v(f"v_add_f32 v{L9}, v{B29}, v{BM9}", w=V(L9), r=V(B29) + V(BM9))
                else: e.v(f"v_add3_f32 v{L9}, v{L9}, v{B29}, v{BM9}" if False else f"v_add_f32 v{B29}, v{B29}, v{BM9}", w=V(B29), r=V(B29) + V(BM9))
                if j > 0: e.v(f"v_add_f32 v{L9}, v{L9}, v{B29}", w=V(L9), r=V(L9) + V(B29))
            for k in range(8): e.t(f"v_exp_f32 v{b0+k}, v{b0+k}", w=V(b0+k), r=V(b0+k))
            for k in range(4):
                a, b = b0 + 2*k, b0 + 2*k + 1
                if g8 == 0 and k == 0:
                    e.v(f"v_mov_b32 v{LA}, v{a}", w=V(LA), r=V(a)); e.v(f"v_mov_b32 v{LB}, v{b}", w=V(LB), r=V(b))
                else:
                    e.v(f"v_add_f32 v{LA}, v{LA}, v{a}", w=V(LA), r=V(LA) + V(a)); e.v(f"v_add_f32 v{LB}, v{LB}, v{b}", w=V(LB), r=V(LB) + V(b))
                e.v(f"v_cvt_pk_bf16_f32 v{b0+k}, v{a}, v{b}", w=V(b0+k), r=V(a) + V(b))
        e.v(f"v_add_f32 v{LA}, v{LA}, v{LB}", w=V(LA), r=V(LA) + V(LB))
        if j == 0: e.v(f"v_mov_b32 v{L_}, v{LA}", w=V(L_), r=V(LA))
        else: e.v(f"v_add_f32 v{L_}, v{L_}, v{LA}", w=V(L_), r=V(L_) + V(LA))
        vrd(7)
        for i in range(20):
            k, t, s = vitems[i]
            e.wait(lg=[('v', j, i)])
            a = R_F + 4*(i % 8)
            if k == 'm':
                e.mfma32(R_O + 16*t, a, R_S + 8*s, None if (j == 0 and s == 0) else R_O + 16*t)
            else:
                for ee in range(2):
                    e.mfma16k16(R_O9 + 4*(t+ee), a + 2*ee, P9, None if j == 0 else R_O9 + 4*(t+ee))
            if i + 8 < 20: vrd(i + 8)
    e.wait(lg0=True); e.barrier()
    X1, X2, X3, X4 = T0, T0+1, T0+2, T0+3
    e.v(f"v_mov_b32 v{X1}, v{L9}", w=V(X1), r=V(L9))
    e.v(f"v_mov_b32 v{X2}, v{L_}", w=V(X2), r=V(L_))
    e.ins(f"v_permlane32_swap_b32 v{L9}, v{X1}", 'perm', w=V(L9) + V(X1), r=V(L9) + V(X1))
    e.ins(f"v_permlane32_swap_b32 v{L_}, v{X2}", 'perm', w=V(L_) + V(X2), r=V(L_) + V(X2))
    e.v(f"v_add_f32 v{L9}, v{L9}, v{X1}", w=V(L9), r=V(L9) + V(X1))
    e.v(f"v_add_f32 v{L_}, v{L_}, v{X2}", w=V(L_), r=V(L_) + V(X2))
    e.v(f"v_mov_b32 v{X1}, v{L9}", w=V(X1), r=V(L9))
    e.t(f"v_rcp_f32 v{L_}, v{L_}", w=V(L_), r=V(L_))
    e.ins(f"v_permlane16_swap_b32 v{L9}, v{X1}", 'perm', w=V(L9) + V(X1), r=V(L9) + V(X1))
    e.v(f"v_add_f32 v{L9}, v{L9}, v{X1}", w=V(L9), r=V(L9) + V(X1))
    q16, gg = X1, X2
    e.v(f"v_and_b32 v{q16}, 15, v{vL}", w=V(q16), r=V(vL))
    e.v(f"v_lshrrev_b32 v{gg}, 4, v{vL}", w=V(gg), r=V(vL))
    e.s(f"s_mul_i32 s3, s{sWV}, 8448", w=S(3)); e.s("s_movk_i32 s4, 528", w=S(4))
    e.v(f"v_mul_lo_u32 v{X3}, v{q16}, s4", w=V(X3), r=V(q16))
    e.v(f"v_lshl_add_u32 v{X4}, v{gg}, 4, v{X3}", w=V(X4), r=V(gg) + V(X3))
    e.v(f"v_add_u32 v{X4}, s3, v{X4}", w=V(X4), r=V(X4))
    for t9 in range(8): e.dsw("ds_write_b128", X4, R_O9 + 4*t9, 4, 64*t9)
    e.s(f"s_lshl_b32 s3, s{sWV}, 7", w=S(3)); e.s(f"s_add_u32 s3, s3, {MLB}", w=S(3))
    e.v(f"v_lshlrev_b32 v{X4}, 3, v{q16}", w=V(X4), r=V(q16))
    e.v(f"v_add_u32 v{vT1}, s3, v{X4}", w=V(vT1), r=V(X4))
    e.v(f"v_mov_b32 v{M9}, v{MC9}", w=V(M9), r=V(MC9))
    e.dsw("ds_write_b64", vT1, M9, 2, 0)
    e.s(f"s_mul_i32 s3, s{sBR}, 72", w=S(3)); e.s(f"s_lshl_b32 s4, s{sB}, 2", w=S(4)); e.s("s_add_u32 s4, s4, s3", w=S(4))
    e.s(f"s_add_u32 s4, s4, s{sWV}", w=S(4)); e.s("s_lshl_b32 s4, s4, 18", w=S(4))
    e.s(f"s_lshl_b32 s5, s{sH}, 13", w=S(5)); e.s(f"s_add_u32 s{sT0}, s4, s5", w=S(sT0))
    e.s(f"s_add_u32 s{sT1}, s{sT0}, 4096", w=S(sT1))
    e.s(f"s_lshr_b32 s4, s{sB}, 1", w=S(4)); e.s("s_add_u32 s4, s4, s3", w=S(4)); e.s("s_add_u32 s4, s4, 64", w=S(4))
    e.s("s_lshl_b32 s4, s4, 18", w=S(4)); e.s(f"s_add_u32 s{sT2}, s4, s5", w=S(sT2))
    e.v(f"v_lshlrev_b32 v{vT2}, 4, v{vL}", w=V(vT2), r=V(vL))
    for ks in range(8):
        b0 = R_O + 8*ks
        for k in range(8): e.v(f"v_mul_f32 v{b0+k}, v{b0+k}, v{L_}", w=V(b0+k), r=V(b0+k) + V(L_))
        for k in range(4): e.v(f"v_cvt_pk_bf16_f32 v{b0+k}, v{b0+2*k}, v{b0+2*k+1}", w=V(b0+k), r=V(b0+2*k, 2))
        e.bstore(b0, 4, vT2, sO, sT0 if ks < 4 else sT1, 1024*(ks % 4))
    e.wait(lg0=True); e.barrier()
    B0 = R_S
    e.v(f"v_lshlrev_b32 v{X4}, 3, v{q16}", w=V(X4), r=V(q16))
    e.v(f"v_add_u32 v{X4}, {MLB}, v{X4}", w=V(X4), r=V(X4))
    for w_ in range(4): e.dsr("ds_read_b64", B0 + 2*w_, 2, X4, 128*w_, 'ml')
    e.s(f"s_lshl_b32 s3, s{sWV}, 7", w=S(3))
    e.v(f"v_lshl_add_u32 v{X3}, v{gg}, 5, v{X3}", w=V(X3), r=V(gg) + V(X3))
    e.v(f"v_add_u32 v{X3}, s3, v{X3}", w=V(X3), r=V(X3))
    for w_ in range(4):
        for hh in range(2): e.dsr("ds_read_b128", R_F + 8*w_ + 4*hh, 4, X3, 8448*w_ + 16*hh, 'o9')
    e.wait(lg=['ml'])
    MM, LL = B0 + 8, B0 + 9
    e.v(f"v_max3_f32 v{MM}, v{B0}, v{B0+2}, v{B0+4}", w=V(MM), r=V(B0, 6))
    e.v(f"v_max_f32 v{MM}, v{MM}, v{B0+6}", w=V(MM), r=V(MM) + V(B0+6))
    for w_ in range(4): e.v(f"v_sub_f32 v{B0+2*w_}, v{B0+2*w_}, v{MM}", w=V(B0+2*w_), r=V(B0+2*w_) + V(MM))
    for w_ in range(4): e.t(f"v_exp_f32 v{B0+2*w_}, v{B0+2*w_}", w=V(B0+2*w_), r=V(B0+2*w_))
    e.v(f"v_mul_f32 v{LL}, v{B0}, v{B0+1}", w=V(LL), r=V(B0, 2))
    for w_ in range(1, 4): e.v(f"v_fmac_f32 v{LL}, v{B0+2*w_}, v{B0+2*w_+1}", w=V(LL), r=V(LL) + V(B0+2*w_, 2))
    e.t(f"v_rcp_f32 v{LL}, v{LL}", w=V(LL), r=V(LL))
    for w_ in range(4): e.v(f"v_mul_f32 v{B0+2*w_}, v{B0+2*w_}, v{LL}", w=V(B0+2*w_), r=V(B0+2*w_) + V(LL))
    e.wait(lg0=True)
    for k in range(8):
        e.v(f"v_mul_f32 v{R_F+k}, v{R_F+k}, v{B0}", w=V(R_F+k), r=V(R_F+k) + V(B0))
        for w_ in range(1, 4):
            e.v(f"v_fmac_f32 v{R_F+k}, v{R_F+8*w_+k}, v{B0+2*w_}", w=V(R_F+k), r=V(R_F+k) + V(R_F+8*w_+k) + V(B0+2*w_))
    for k in range(4): e.v(f"v_cvt_pk_bf16_f32 v{R_F+k}, v{R_F+2*k}, v{R_F+2*k+1}", w=V(R_F+k), r=V(R_F+2*k, 2))
    e.s(f"s_and_b32 s3, s{sB}, 1", w=S(3)); e.s("s_lshl_b32 s3, s3, 8", w=S(3))
    e.s(f"s_lshl_b32 s4, s{sWV}, 11", w=S(4)); e.s("s_add_u32 s3, s3, s4", w=S(3))
    e.v(f"v_lshlrev_b32 v{X3}, 9, v{gg}", w=V(X3), r=V(gg))
    e.v(f"v_lshl_add_u32 v{X3}, v{q16}, 4, v{X3}", w=V(X3), r=V(q16) + V(X3))
    e.v(f"v_add_u32 v{X3}, s3, v{X3}", w=V(X3), r=V(X3))
    e.bstore(R_F, 4, X3, sO, sT2, 0)
    e.label(f"{name}_end")
    e.raw("    s_endpgm")
    for j in resc:
        e.label(f"{name}_rs{j}")
        e.nop(16)
        BM, BM9, A1, A9 = T0, T0+2, T0+1, T0+3
        e.v(f"v_max_f32 v{BM}, v{BM}, v{M_}", w=V(BM), r=V(BM) + V(M_))
        e.v(f"v_max_f32 v{BM9}, v{BM9}, v{M9}", w=V(BM9), r=V(BM9) + V(M9))
        e.v(f"v_sub_f32 v{A1}, v{M_}, v{BM}", w=V(A1), r=V(M_) + V(BM))
        e.v(f"v_sub_f32 v{A9}, v{M9}, v{BM9}", w=V(A9), r=V(M9) + V(BM9))
        e.v(f"v_mul_f32 v{A1}, s{sC}, v{A1}", w=V(A1), r=V(A1)); e.v(f"v_mul_f32 v{A9}, s{sC}, v{A9}", w=V(A9), r=V(A9))
        e.t(f"v_exp_f32 v{A1}, v{A1}", w=V(A1), r=V(A1)); e.t(f"v_exp_f32 v{A9}, v{A9}", w=V(A9), r=V(A9))
        e.v(f"v_mov_b32 v{M_}, v{BM}", w=V(M_), r=V(BM)); e.v(f"v_mov_b32 v{M9}, v{BM9}", w=V(M9), r=V(BM9))
        e.v(f"v_mul_f32 v{MC}, s{sC}, v{BM}", w=V(MC), r=V(BM)); e.v(f"v_mul_f32 v{MC9}, s{sC}, v{BM9}", w=V(MC9), r=V(BM9))
        e.v(f"v_mul_f32 v{L_}, v{L_}, v{A1}", w=V(L_), r=V(L_) + V(A1)); e.v(f"v_mul_f32 v{L9}, v{L9}, v{A9}", w=V(L9), r=V(L9) + V(A9))
        for k in range(64): e.v(f"v_mul_f32 v{R_O+k}, v{R_O+k}, v{A1}", w=V(R_O+k), r=V(R_O+k) + V(A1))
        for k in range(32): e.v(f"v_mul_f32 v{R_O9+k}, v{R_O9+k}, v{A9}", w=V(R_O9+k), r=V(R_O9+k) + V(A9))
        e.nop(4)
        e.s(f"s_branch {name}_rb{j}")
    return e.text()
```

```python
from emit import *
import os
EXP = os.environ.get('K2EXP', '')
from k1 import load_ptrs, mk_srd
NR = 8
LDS2 = 147456
ACC = 256
BB = 0
AF = 96
vAW = 200
vDW = 208
vL, vLO = 210, 211
T0 = 212
RB = 48
NV2 = 448
sW, sO, sOUT = 8, 12, 16
sWV, sBR, sRG, sNG, sWO, sLW = 28, 29, 30, 31, 34, 36
sB0, sB1, sB2, sT0 = 40, 41, 42, 43

def gen_k2(name):
    e = Em()
    e.label(name)
    e.s("s_cmp_ge_u32 s2, 240"); e.s(f"s_cbranch_scc1 {name}_end")
    load_ptrs(e)
    def vv(t, w, r=()): e.v(t, w=V(w), r=[x for a in r for x in V(a)])
    vv(f"v_and_b32 v{vL}, 63, v0", vL, [0])
    vv(f"v_lshrrev_b32 v{T0}, 6, v0", T0, [0])
    e.ins(f"v_readfirstlane_b32 s{sWV}, v{T0}", 'rdlane', w=S(sWV), r=V(T0))
    e.s("s_and_b32 s3, s2, 7"); e.s("s_lshr_b32 s4, s2, 3")
    e.s(f"s_lshr_b32 s{sBR}, s3, 2"); e.s("s_and_b32 s3, s3, 3"); e.s("s_mul_i32 s3, s3, 6")
    e.s("s_mul_i32 s5, s4, 205"); e.s("s_lshr_b32 s5, s5, 10")
    e.s(f"s_add_u32 s{sRG}, s3, s5"); e.s("s_mul_i32 s5, s5, 5"); e.s(f"s_sub_u32 s{sNG}, s4, s5")
    e.s(f"s_mul_i32 s3, s{sWV}, {1024*1280}", r=S(sWV)); e.s(f"s_lshl_b32 s4, s{sNG}, 8"); e.s(f"s_add_u32 s{sWO}, s3, s4")
    e.s(f"s_mul_i32 s{sLW}, s{sWV}, {NR*4096}")
    e.s(f"s_mul_i32 s3, s{sBR}, 72"); e.s(f"s_mul_i32 s4, s{sRG}, 3"); e.s("s_add_u32 s3, s3, s4"); e.s("s_lshl_b32 s3, s3, 18")
    e.s(f"s_lshl_b32 s4, s{sWV}, 16"); e.s(f"s_add_u32 s{sB0}, s3, s4")
    e.s(f"s_add_u32 s{sB1}, s{sB0}, {1<<18}"); e.s(f"s_add_u32 s{sB2}, s{sB0}, {2<<18}")
    A, Bq, C_, D_, R4, CC, DH, LOWC, SUB, X1, X2 = [T0 + i for i in range(11)]
    vv(f"v_lshrrev_b32 v{A}, 4, v{vL}", A, [vL]); vv(f"v_and_b32 v{Bq}, 15, v{vL}", Bq, [vL])
    vv(f"v_lshrrev_b32 v{D_}, 5, v{vL}", D_, [vL])
    e.s("s_movk_i32 s3, 1280", w=S(3))
    vv(f"v_mul_lo_u32 v{X1}, v{A}, s3", X1, [A])
    for ee in range(2):
        vv(f"v_lshlrev_b32 v{C_}, 2, v{A}", C_, [A]); vv(f"v_xor_b32 v{C_}, v{C_}, v{Bq}", C_, [C_, Bq])
        if ee: vv(f"v_xor_b32 v{C_}, 2, v{C_}", C_, [C_])
        vv(f"v_lshl_add_u32 v{vDW+ee}, v{C_}, 4, v{X1}", vDW+ee, [C_, X1])
    vv(f"v_lshlrev_b32 v{vLO}, 4, v{vL}", vLO, [vL])
    e.wait(lg0=True)
    e.s(f"s_cmp_eq_u32 s{sBR}, 0")
    mk_srd(e, sW, 72, 82, 5242880); mk_srd(e, sO, 86, None, 37748736); mk_srd(e, sOUT, 84, None, 5898240)
    def issue(ks):
        if ks >= 64: return
        sl = ks % NR
        for u in range(4):
            e.s(f"s_add_u32 s{sT0}, s{sWO}, {(ks*16 + 4*u)*1280}", w=S(sT0))
            e.s(f"s_add_u32 m0, s{sLW}, {sl*4096 + u*1024}", w=[('m0', 0)])
            if 'nodma' not in EXP: e.dma(vDW + (u & 1), sW, sT0, 0, ('w', ks))
        if ks % 4 == 0 and ks > 0:
            for s_ in (sB0, sB1, sB2): e.s(f"s_add_u32 s{s_}, s{s_}, 4096", w=S(s_))
        for rt, s_ in enumerate((sB0, sB1, sB2)):
            if 'nob' not in EXP: e.bload(BB + 12*sl + 4*rt, 4, vLO, sO, s_, 1024*(ks % 4), ('b', ks))
    for ks in range(NR - 1): issue(ks)
    vv(f"v_lshrrev_b32 v{R4}, 2, v{Bq}", R4, [Bq]); vv(f"v_and_b32 v{CC}, 3, v{vL}", CC, [vL]); vv(f"v_and_b32 v{DH}, 1, v{A}", DH, [A])
    vv(f"v_and_b32 v{LOWC}, 1, v{CC}", LOWC, [CC]); vv(f"v_lshl_add_u32 v{LOWC}, v{DH}, 1, v{LOWC}", LOWC, [DH, LOWC])
    vv(f"v_lshrrev_b32 v{SUB}, 1, v{CC}", SUB, [CC]); vv(f"v_lshlrev_b32 v{SUB}, 3, v{SUB}", SUB, [SUB])
    vv(f"v_add_u32 v{SUB}, s{sLW}, v{SUB}", SUB, [SUB])
    for t in range(4):
        vv(f"v_xor_b32 v{X1}, {t}, v{R4}", X1, [R4])
        for ee in range(2):
            d = vAW + 2*t + ee
            vv(f"v_xor_b32 v{X2}, {2*ee}, v{LOWC}", X2, [LOWC])
            vv(f"v_lshl_add_u32 v{X2}, v{X1}, 2, v{X2}", X2, [X1, X2])
            vv(f"v_lshl_add_u32 v{X2}, v{X2}, 4, v{SUB}", X2, [X2, SUB])
            vv(f"v_lshl_add_u32 v{X2}, v{R4}, 8, v{X2}", X2, [R4, X2])
            vv(f"v_lshl_add_u32 v{d}, v{D_}, 11, v{X2}", d, [D_, X2])
            if ee: vv(f"v_add_u32 v{d}, 1024, v{d}", d, [d])
    def ard(ks):
        if ks >= 64: return
        e.wait(vm=[('w', ks)])
        for t in range(4):
            for ee in range(2):
                e.dsr("ds_read_b64_tr_b16", AF + 16*(ks % 2) + 4*t + 2*ee, 2, vAW + 2*t + ee, (ks % NR)*4096, ('a', ks, t))
    ard(0)
    for ks in range(64):
        ard(ks + 1)
        issue(ks + NR - 1)
        e.wait(vm=[('b', ks)])
        for t in range(4):
            e.wait(lg=[('a', ks, t)])
            for rt in range(3):
                d = ACC + 16*(rt*4 + t)
                if 'nomfma' not in EXP or ks == 0: e.mfma32(d, AF + 16*(ks % 2) + 4*t, BB + 12*(ks % NR) + 4*rt, None if ks == 0 else d)
    e.wait(lg0=True, vm0=True); e.barrier(); e.nop(16)
    AD = T0
    for nt in range(4):
        e.s(f"s_cmp_eq_u32 s{sWV}, {nt}"); e.s(f"s_cbranch_scc1 {name}_sk{nt}")
        e.s(f"s_sub_u32 s3, s{sWV}, {nt+1}", w=S(3)); e.s("s_and_b32 s3, s3, 3", w=S(3))
        e.s(f"s_mul_i32 s3, s3, 12288", w=S(3)); e.s(f"s_add_u32 s3, s3, {nt*36864}", w=S(3))
        vv(f"v_add_u32 v{AD}, s3, v{vLO}", AD, [vLO])
        for rt in range(3):
            for q4 in range(4):
                e.dsw("ds_write_b128", AD, ACC + 16*(rt*4 + nt) + 4*q4, 4, rt*4096 + q4*1024)
        e.wait(lg0=True)
        e.label(f"{name}_sk{nt}")
        e.nop(2)
    e.wait(lg0=True); e.barrier()
    OWN = BB
    for nt in range(4):
        e.s(f"s_cmp_lg_u32 s{sWV}, {nt}"); e.s(f"s_cbranch_scc1 {name}_mv{nt}")
        for rt in range(3):
            for k in range(16): vv(f"v_accvgpr_read_b32 v{OWN+16*rt+k}, {vr(ACC+16*(rt*4+nt)+k)}", OWN+16*rt+k, [ACC+16*(rt*4+nt)+k])
        e.label(f"{name}_mv{nt}")
        e.nop(2)
    e.s(f"s_mul_i32 s3, s{sWV}, 36864", w=S(3))
    vv(f"v_add_u32 v{AD}, s3, v{vLO}", AD, [vLO])
    for sl in range(3):
        for rt in range(3):
            for q4 in range(4):
                e.dsr("ds_read_b128", RB + 48*sl + 16*rt + 4*q4, 4, AD, sl*12288 + rt*4096 + q4*1024, ('r', sl))
        e.wait(lg0=True)
    for k in range(48):
        vv(f"v_add_f32 v{OWN+k}, v{OWN+k}, v{RB+k}", OWN+k, [OWN+k, RB+k])
        vv(f"v_add_f32 v{RB+48+k}, v{RB+48+k}, v{RB+96+k}", RB+48+k, [RB+48+k, RB+96+k])
    for k in range(48): vv(f"v_add_f32 v{OWN+k}, v{OWN+k}, v{RB+48+k}", OWN+k, [OWN+k, RB+48+k])
    for k in range(24): vv(f"v_cvt_pk_bf16_f32 v{OWN+k}, v{OWN+2*k}, v{OWN+2*k+1}", OWN+k, [OWN+2*k, OWN+2*k+1])
    Q32, ROW, COL = T0+1, T0+2, T0+3
    vv(f"v_and_b32 v{Q32}, 31, v{vL}", Q32, [vL])
    vv(f"v_lshrrev_b32 v{COL}, 5, v{vL}", COL, [vL]); vv(f"v_lshlrev_b32 v{COL}, 4, v{COL}", COL, [COL])
    e.s(f"s_mul_i32 s3, s{sBR}, 1280", w=S(3)); e.s(f"s_lshl_b32 s4, s{sNG}, 8", w=S(4)); e.s("s_add_u32 s3, s3, s4", w=S(3))
    e.s(f"s_lshl_b32 s4, s{sWV}, 6", w=S(4)); e.s("s_add_u32 s3, s3, s4", w=S(3))
    vv(f"v_add_u32 v{COL}, s3, v{COL}", COL, [COL])
    TL = T0 + 4
    vv(f"v_lshrrev_b32 v{TL}, 4, v{Q32}", TL, [Q32]); vv(f"v_mul_u32_u24 v{TL}, 144, v{TL}", TL, [TL])
    vv(f"v_and_b32 v{ROW}, 15, v{Q32}", ROW, [Q32]); vv(f"v_add_u32 v{TL}, v{TL}, v{ROW}", TL, [TL, ROW])
    e.s("s_movk_i32 s7, 2560", w=S(7))
    for rt in range(3):
        e.s(f"s_mul_i32 s3, s{sRG}, 3", w=S(3)); e.s(f"s_add_u32 s3, s3, {rt}", w=S(3))
        e.s("s_lshr_b32 s4, s3, 2", w=S(4)); e.s("s_mul_i32 s4, s4, 144", w=S(4)); e.s("s_and_b32 s5, s3, 3", w=S(5))
        e.s("s_lshl_b32 s5, s5, 5", w=S(5)); e.s("s_add_u32 s4, s4, s5", w=S(4))
        e.s("s_sub_u32 s5, s3, 64", w=S(5)); e.s("s_mul_i32 s5, s5, 288", w=S(5)); e.s("s_add_u32 s5, s5, 128", w=S(5))
        e.s("s_cmp_lt_u32 s3, 64"); e.s("s_cselect_b32 s4, s4, s5", w=S(4)); e.s("s_cselect_b64 vcc, -1, 0", w=[('vcc', 0)])
        e.nop(1)
        e.v(f"v_cndmask_b32 v{ROW}, v{TL}, v{Q32}, vcc", w=V(ROW), r=V(TL) + V(Q32))
        vv(f"v_add_u32 v{ROW}, s4, v{ROW}", ROW, [ROW])
        vv(f"v_mul_lo_u32 v{ROW}, v{ROW}, s7", ROW, [ROW])
        vv(f"v_add_u32 v{T0+5+rt}, v{ROW}, v{COL}", T0+5+rt, [ROW, COL])
        for s1 in range(2): e.bstore(OWN + 8*rt + 4*s1, 4, T0+5+rt, sOUT, "0", 32*s1)
    e.label(f"{name}_end")
    e.raw("    s_endpgm")
    return e.text()
```

```python
import sys
sys.path.insert(0, 'gen')
import k0, k1, k2
N = "concat_heads__gqa_block_cached__gqa_block_cached__near_ridge"
ref = open(f"cdna_kernels/{N}.s.ref").read().split("\n")
hdr = [l for l in ref if l.startswith(";") and "@launch" not in l and "Override" not in l and "grid=ceil" not in l]
def kd(name, nv, acc):
    return f""".p2align 6
.amdhsa_kernel {name}
  .amdhsa_next_free_vgpr {nv}
  .amdhsa_next_free_sgpr 102
  .amdhsa_accum_offset {acc}
  .amdhsa_group_segment_fixed_size 0
  .amdhsa_kernarg_size 104
  .amdhsa_user_sgpr_count 2
  .amdhsa_user_sgpr_kernarg_segment_ptr 1
  .amdhsa_system_sgpr_workgroup_id_x 1
.end_amdhsa_kernel
"""
K1 = N + "_kernel"; K2 = "oproj_kernel"; K0 = "xprep_kernel"
out = "\n".join(hdr) + "\n"
out += f"; @launch kernel={K0} grid=(400,1,1) block=(256,1,1) lds=0\n"
out += f"; @launch kernel={K1} grid=(1024,1,1) block=(256,1,1) lds={k1.LDS1}\n"
out += f"; @launch kernel={K2} grid=({k2.G2},1,1) block=(256,1,1) lds={k2.LDS2}\n"
out += '.amdgcn_target "amdgcn-amd-amdhsa--gfx950"\n.text\n'
for nm, g in ((K0, k0.gen_k0), (K1, k1.gen_k1), (K2, k2.gen_k2)):
    out += f".globl {nm}\n.p2align 8\n.type {nm},@function\n" + g(nm)
out += '.section .rodata,"a"\n' + kd(K0, 24, 24) + kd(K1, 256, 256) + kd(K2, k2.NV2, 256)
dst = sys.argv[1] if len(sys.argv) > 1 else f"cdna_kernels/{N}.s"
open(dst, "w").write(out)
print("wrote", dst, len(out))
```

```python
def V(a, n=1): return [('v', a + i) for i in range(n)]
def S(a, n=1): return [('s', a + i) for i in range(n)]
def vr(a, n=1):
    p = "v"
    if a >= 256: p = "a"; a -= 256
    return f"{p}{a}" if n == 1 else f"{p}[{a}:{a+n-1}]"
def sr(a, n=1): return f"s{a}" if n == 1 else f"s[{a}:{a+n-1}]"

import os
EXP1 = os.environ.get('K1EXP', '')
class Em:
    def __init__(self):
        self.lines = []
        self.hist = []
        self.pos = 0
        self.vm = []
        self.lg = []
    def raw(self, t):
        self.lines.append(t)
    def label(self, l):
        self.lines.append(l + ":")
    def barrier_hist(self, n=16):
        self.nop(n)
    def nop(self, n):
        while n > 0:
            k = min(n, 16)
            self.lines.append(f"    s_nop {k-1}")
            self.pos += k
            n -= k
    def need(self, kind, w, r, srcc, ab, dt):
        req = 0
        isv = kind in ('valu', 'trans', 'perm', 'rdlane', 'dpp')
        for (p, k, pw, pr, pc, pdt) in self.hist:
            d = self.pos - p - 1
            n = 0
            pv = k in ('valu', 'trans', 'perm', 'rdlane', 'dpp')
            pm = k in ('mfma32', 'mfma16')
            if pv and kind in ('mfma32', 'mfma16') and (pw & r): n = max(n, 2)
            if pm:
                big = 12 if k == 'mfma32' else 8
                if kind in ('mfma32', 'mfma16'):
                    if pw & ab: n = max(n, big)
                    if pw & srcc:
                        if not (pdt == dt and k == kind and srcc == pw): n = max(n, big - 2)
                    elif pw & w: n = max(n, big)
                else:
                    if (pw & r) or (pw & w): n = max(n, big)
                    if isv and (pc & w): n = max(n, 7 if k == 'mfma32' else 3)
            if k == 'trans' and isv and kind != 'trans' and (pw & r): n = max(n, 1)
            if k == 'trans' and kind == 'trans' and (pw & r): n = max(n, 1)
            if pv and kind in ('perm', 'dpp') and (pw & r): n = max(n, 2)
            if pv and kind == 'rdlane' and (pw & r): n = max(n, 1)
            if pv:
                sw = {x for x in pw if x[0] in ('s', 'vcc')}
                if sw & r:
                    if isv: n = max(n, 2)
                    elif kind in ('vload', 'vstore', 'dma'): n = max(n, 5)
                    else: n = max(n, 2)
            if k == 'salu' and ('m0', 0) in pw and kind == 'dma': n = max(n, 1)
            if k in ('vstore', 'dswrite') and isv and (pr & w): n = max(n, 2)
            if k in ('vstore', 'dswrite') and kind in ('vload', 'dsread') and (pr & w): n = max(n, 1)
            if n > d: req = max(req, n - d)
        return req
    def ins(self, text, kind, w=(), r=(), srcc=(), ab=(), dt=None):
        if getattr(self, 'abl', False):
            if 'nomfma' in EXP1 and kind in ('mfma32', 'mfma16'): return
            if 'nosm' in EXP1 and (text.startswith('v_exp') or text.startswith('v_fma') or text.startswith('v_max3') or text.startswith('v_add_f32') or text.startswith('v_cvt')): return
            if 'nods' in EXP1 and kind == 'dsread': return
            if 'nokv' in EXP1 and kind == 'dma' and 's[20:23]' not in text: return
            if 'nowq' in EXP1 and ((kind == 'dma' and 's[20:23]' in text) or kind == 'vload'): return
        w = frozenset(w); r = frozenset(r) | frozenset(srcc) | frozenset(ab)
        srcc = frozenset(srcc); ab = frozenset(ab)
        n = self.need(kind, w, r, srcc, ab, dt)
        if n: self.nop(n)
        self.lines.append("    " + text)
        self.hist.append((self.pos, kind, w, r, srcc, dt))
        self.pos += 1
        if len(self.hist) > 24: self.hist.pop(0)
    def s(self, text, w=(), r=()): self.ins(text, 'salu', w, r)
    def v(self, text, w=(), r=()): self.ins(text, 'valu', w, r)
    def t(self, text, w=(), r=()): self.ins(text, 'trans', w, r)
    def mfma32(self, d, a, b, c=None):
        cs = "0" if c is None else vr(c, 16)
        self.ins(f"v_mfma_f32_32x32x16_bf16 {vr(d,16)}, {vr(a,4)}, {vr(b,4)}, {cs}", 'mfma32',
                 w=V(d, 16), srcc=V(c, 16) if c is not None else (), ab=V(a, 4) + V(b, 4), dt=(d, 16))
    def mfma16(self, d, a, b, c=None):
        cs = "0" if c is None else vr(c, 4)
        self.ins(f"v_mfma_f32_16x16x32_bf16 {vr(d,4)}, {vr(a,4)}, {vr(b,4)}, {cs}", 'mfma16',
                 w=V(d, 4), srcc=V(c, 4) if c is not None else (), ab=V(a, 4) + V(b, 4), dt=(d, 4))
    def mfma16k16(self, d, a, b, c=None):
        cs = "0" if c is None else vr(c, 4)
        self.ins(f"v_mfma_f32_16x16x16_bf16 {vr(d,4)}, {vr(a,2)}, {vr(b,2)}, {cs}", 'mfma16',
                 w=V(d, 4), srcc=V(c, 4) if c is not None else (), ab=V(a, 2) + V(b, 2), dt=(d, 4))
    def dsr(self, op, d, n, addr, off, tag):
        assert 0 <= off < 65536, off
        self.ins(f"{op} {vr(d,n)}, v{addr} offset:{off}", 'dsread', w=V(d, n), r=V(addr))
        self.lg.append(tag)
    def dsw(self, op, addr, s, n, off, tag='w'):
        assert 0 <= off < 65536, off
        self.ins(f"{op} v{addr}, {vr(s,n)} offset:{off}", 'dswrite', r=V(addr) + V(s, n))
        self.lg.append(tag)
    def bload(self, d, n, voff, srd, soff, off, tag, fl=""):
        op = {1: "buffer_load_dword", 2: "buffer_load_dwordx2", 4: "buffer_load_dwordx4"}[n]
        so = f"s{soff}" if isinstance(soff, int) else soff
        rr = V(voff) + S(srd, 4) + (S(soff) if isinstance(soff, int) else [])
        self.ins(f"{op} {vr(d,n)}, v{voff}, {sr(srd,4)}, {so} offen offset:{off}{fl}", 'vload', w=V(d, n), r=rr)
        self.vm.append(tag)
    def bstore(self, s_, n, voff, srd, soff, off, tag='st', fl=""):
        op = {1: "buffer_store_dword", 2: "buffer_store_dwordx2", 4: "buffer_store_dwordx4"}[n]
        so = f"s{soff}" if isinstance(soff, int) else soff
        rr = V(voff) + V(s_, n) + S(srd, 4) + (S(soff) if isinstance(soff, int) else [])
        self.ins(f"{op} {vr(s_,n)}, v{voff}, {sr(srd,4)}, {so} offen offset:{off}{fl}", 'vstore', r=rr)
        self.vm.append(tag)
    def dma(self, voff, srd, soff, off, tag, fl=""):
        so = f"s{soff}" if isinstance(soff, int) else soff
        rr = V(voff) + S(srd, 4) + (S(soff) if isinstance(soff, int) else []) + [('m0', 0)]
        self.ins(f"buffer_load_dwordx4 v{voff}, {sr(srd,4)}, {so} offen offset:{off}{fl} lds", 'dma', r=rr)
        self.vm.append(tag)
    def _cnt(self, lst, tags):
        last = -1
        for i, t in enumerate(lst):
            if t in tags: last = i
        if last < 0: return None
        return len(lst) - 1 - last
    def wait(self, vm=(), lg=(), vm0=False, lg0=False):
        parts = []
        if vm0 or vm:
            n = 0 if vm0 else self._cnt(self.vm, set(vm))
            if n is not None and (self.vm or vm0):
                n = min(n, 63)
                parts.append(f"vmcnt({n})")
                self.vm = self.vm[len(self.vm) - n:] if n else []
        if lg0 or lg:
            n = 0 if lg0 else self._cnt(self.lg, set(lg))
            if n is not None and (self.lg or lg0):
                n = min(n, 15)
                parts.append(f"lgkmcnt({n})")
                self.lg = self.lg[len(self.lg) - n:] if n else []
        if parts:
            self.ins("s_waitcnt " + " ".join(parts), 'salu')
    def barrier(self):
        self.ins("s_barrier", 'salu')
    def text(self):
        return "\n".join(self.lines) + "\n"
```

```python
from emit import *
import math, struct
def f2u(f): return struct.unpack('<I', struct.pack('<f', f))[0]
CSC = math.log2(math.e) / math.sqrt(128.0)
THR = 8.0 / CSC

SLOT = 16384
KVB = 16384
Q9B = 0
MLB = 4096
LDS1 = 81920
R_O, R_SA, R_SB, R_Q, R_F, R_O9 = 0, 64, 96, 128, 160, 192
R_QA = 160
R_TA = 224
S9A, S9B, P9 = 224, 228, 232
M9, L9, M_, L_, MC, MC9 = 234, 235, 236, 237, 238, 239
T0 = 240
vKA, vVA, vK9, vV9, vDK, vDV, vL, vT2 = 248, 249, 250, 251, 252, 253, 254, 255
vAW, vDW, vX = 96, 104, 106
sK, sV, sW, sO = 12, 16, 20, 24
sWV, sBR, sB, sH, sXO, sWO, sKO, sLW, sC, sTH = 28, 29, 30, 31, 32, 34, 35, 36, 37, 38
sT0, sT1, sT2 = 40, 41, 42
sKX = 44
KVFL = " nt"
XF = 37748736
WSZ = XF + 6553600
def load_ptrs(e):
    e.s("s_load_dwordx16 s[64:79], s[0:1], 0", w=S(64, 16))
    e.s("s_load_dwordx4 s[80:83], s[0:1], 64", w=S(80, 4))
    e.s("s_load_dwordx2 s[84:85], s[0:1], 80", w=S(84, 2))
    e.s("s_load_dwordx2 s[86:87], s[0:1], 96", w=S(86, 2))

def mk_srd(e, d, a, b, size):
    if b is None:
        e.s(f"s_mov_b32 s{d}, s{a}"); e.s(f"s_and_b32 s{d+1}, s{a+1}, 0xffff")
    else:
        e.s(f"s_cselect_b32 s{d}, s{a}, s{b}"); e.s(f"s_cselect_b32 s{d+1}, s{a+1}, s{b+1}")
    e.s(f"s_mov_b32 s{d+2}, {size}"); e.s(f"s_mov_b32 s{d+3}, 0x00020000")


def gen_k1(name):
    e = Em(); e.abl = True
    e.label(name)
    e.s("s_cmp_ge_u32 s2, 1024"); e.s(f"s_cbranch_scc1 {name}_end")
    load_ptrs(e)
    def vv(t, w, r=()): e.v(t, w=V(w), r=[x for a in r for x in V(a)])
    vv(f"v_and_b32 v{vL}, 63, v0", vL, [0])
    vv(f"v_lshrrev_b32 v{T0}, 6, v0", T0, [0])
    e.ins(f"v_readfirstlane_b32 s{sWV}, v{T0}", 'rdlane', w=S(sWV), r=V(T0))
    e.s("s_and_b32 s3, s2, 7"); e.s("s_lshr_b32 s4, s2, 3")
    e.s(f"s_lshr_b32 s{sBR}, s3, 2")
    e.s("s_and_b32 s3, s3, 3"); e.s("s_lshl_b32 s3, s3, 3"); e.s("s_and_b32 s5, s4, 7")
    e.s(f"s_add_u32 s{sH}, s3, s5"); e.s(f"s_lshr_b32 s{sB}, s4, 3")
    e.s(f"s_mov_b32 s{sC}, {f2u(CSC)}"); e.s(f"s_mov_b32 s{sTH}, {f2u(THR)}")
    e.s(f"s_lshl_b32 s3, s{sBR}, 4"); e.s(f"s_add_u32 s3, s3, s{sB}"); e.s("s_mul_i32 s3, s3, 204800"); e.s(f"s_add_u32 s{sXO+1}, s3, {XF + 4*40960}")
    e.s(f"s_mul_i32 s4, s{sWV}, 40960", r=S(sWV)); e.s("s_add_u32 s3, s3, s4"); e.s(f"s_add_u32 s{sXO}, s3, {XF}")
    e.s(f"s_lshl_b32 s{sLW}, s{sWV}, 12")
    e.s(f"s_lshl_b32 s3, s{sWV}, 16"); e.s(f"s_lshl_b32 s4, s{sH}, 8"); e.s(f"s_add_u32 s{sWO}, s3, s4")
    e.s(f"s_lshl_b32 s3, s{sB}, 5"); e.s(f"s_add_u32 s3, s3, s{sH}"); e.s("s_lshl_b32 s3, s3, 17")
    e.s(f"s_add_u32 s{sKO}, s3, s{sLW}")
    e.s(f"s_lshl_b32 s39, s{sWV}, 11")
    A, Bq, C_, D_, E_, F_, X1, X2 = [T0 + i for i in range(8)]
    vv(f"v_lshrrev_b32 v{A}, 4, v{vL}", A, [vL])
    vv(f"v_and_b32 v{Bq}, 15, v{vL}", Bq, [vL])
    vv(f"v_xor_b32 v{C_}, v{A}, v{Bq}", C_, [A, Bq])
    vv(f"v_lshlrev_b32 v{C_}, 4, v{C_}", C_, [C_])
    vv(f"v_lshl_add_u32 v{vDK}, v{A}, 8, v{C_}", vDK, [A, C_])
    vv(f"v_lshl_add_u32 v{vK9}, v{Bq}, 8, v{C_}", vK9, [Bq, C_])
    vv(f"v_lshlrev_b32 v{C_}, 2, v{A}", C_, [A])
    vv(f"v_xor_b32 v{C_}, v{C_}, v{Bq}", C_, [C_, Bq])
    vv(f"v_lshlrev_b32 v{C_}, 4, v{C_}", C_, [C_])
    vv(f"v_lshl_add_u32 v{vDV}, v{A}, 8, v{C_}", vDV, [A, C_])
    vv(f"v_lshl_add_u32 v{vDW}, v{A}, 13, v{C_}", vDW, [A, C_])
    vv(f"v_xor_b32 v{vDW+1}, 32, v{vDW}", vDW+1, [vDW])
    vv(f"v_and_b32 v{C_}, 31, v{vL}", C_, [vL])
    vv(f"v_lshrrev_b32 v{D_}, 5, v{vL}", D_, [vL])
    vv(f"v_lshlrev_b32 v{vX}, 4, v{vL}", vX, [vL])
    e.wait(lg0=True)
    e.s(f"s_cmp_eq_u32 s{sBR}, 0")
    mk_srd(e, sK, 66, 76, 67108864); mk_srd(e, sV, 68, 78, 67108864)
    mk_srd(e, sW, 70, 80, 5242880); mk_srd(e, sO, 86, None, WSZ)
    seq = [('K', 0)]
    for j in range(7): seq += [('K', j + 1), ('V', j)]
    seq += [('V', 7)]
    def slot_of(n): return ((n + 1) % 4) * SLOT
    DT = [107, 108]
    def issue_kv(n, us=(0, 1, 2, 3), tmp=None):
        if n > 15: return
        kind, j = seq[n]
        tmp = tmp or DT
        e.s(f"s_add_u32 s{sT0}, s{sKO}, {j*16384}", w=S(sT0))
        e.s(f"s_add_u32 m0, s{sLW}, {KVB + slot_of(n)}", w=[('m0', 0)])
        for u in us:
            x = (64*u) if kind == 'K' else (32*(u & 1))
            base = vDK if kind == 'K' else vDV
            a = base
            if x:
                a = tmp[u & 1]
                vv(f"v_xor_b32 v{a}, {x}, v{base}", a, [base])
            e.dma(a, sK if kind == 'K' else sV, sT0, u*1024, ('kv', n), KVFL)
    def wsub(c): return ((c + 2) % 4) * 8192
    def issue_w(c):
        if c > 19: return
        for u in range(2):
            e.s(f"s_add_u32 s{sT0}, s{sWO}, {c*262144 + u*32768}", w=S(sT0))
            e.s(f"s_add_u32 m0, s39, {wsub(c) + u*1024}", w=[('m0', 0)])
            e.dma(vDW + u, sW, sT0, 0, ('w', c))
        e.s(f"s_add_u32 s{sT1}, s{sXO}, {c*2048}", w=S(sT1))
        e.s(f"s_add_u32 s{sT2}, s{sXO+1}, {c*2048}", w=S(sT2))
        b0 = 16 * (c % 4)
        for s in range(2): e.bload(b0 + 4*s, 4, vX, sO, sT1, 1024*s, ('w', c))
        for s in range(2): e.bload(b0 + 8 + 4*s, 4, vX, sO, sT2, 1024*s, ('w', c))
    issue_w(0); issue_w(1); issue_w(2)
    R4, CC, DH, LOWC, SUB = E_, F_, 110, 111, 112
    vv(f"v_lshrrev_b32 v{R4}, 2, v{Bq}", R4, [Bq])
    vv(f"v_and_b32 v{CC}, 3, v{vL}", CC, [vL])
    vv(f"v_and_b32 v{DH}, 1, v{A}", DH, [A])
    vv(f"v_and_b32 v{LOWC}, 1, v{CC}", LOWC, [CC])
    vv(f"v_lshl_add_u32 v{LOWC}, v{DH}, 1, v{LOWC}", LOWC, [DH, LOWC])
    vv(f"v_lshrrev_b32 v{SUB}, 1, v{CC}", SUB, [CC])
    vv(f"v_lshlrev_b32 v{SUB}, 3, v{SUB}", SUB, [SUB])
    for u in range(4):
        e.s(f"s_add_u32 s3, s{sWV}, {u}", w=S(3)); e.s("s_and_b32 s3, s3, 3", w=S(3))
        e.s(f"s_lshl_b32 s{sKX+2*u}, s3, 6", w=S(sKX+2*u)); e.s(f"s_xor_b32 s{sKX+2*u+1}, s{sKX+2*u}, 32", w=S(sKX+2*u+1))
        vv(f"v_xor_b32 v{X1}, s3, v{R4}", X1, [R4])
        for ee in range(2):
            d = vAW + 2*u + ee
            vv(f"v_xor_b32 v{X2}, {2*ee}, v{LOWC}", X2, [LOWC])
            vv(f"v_lshl_add_u32 v{X2}, v{X1}, 2, v{X2}", X2, [X1, X2])
            vv(f"v_lshl_add_u32 v{X2}, v{X2}, 4, v{SUB}", X2, [X2, SUB])
            vv(f"v_lshl_add_u32 v{X2}, v{R4}, 8, v{X2}", X2, [R4, X2])
            vv(f"v_lshl_add_u32 v{d}, v{D_}, 12, v{X2}", d, [D_, X2])
            if ee: vv(f"v_add_u32 v{d}, 1024, v{d}", d, [d])
    vv(f"v_lshlrev_b32 v{X2}, 1, v{D_}", X2, [D_])
    vv(f"v_xor_b32 v{X2}, v{X2}, v{LOWC}", X2, [X2, LOWC])
    vv(f"v_lshl_add_u32 v{X2}, v{R4}, 2, v{X2}", X2, [R4, X2])
    vv(f"v_lshl_add_u32 v{X2}, v{X2}, 4, v{SUB}", X2, [X2, SUB])
    vv(f"v_lshl_add_u32 v{X2}, v{R4}, 8, v{X2}", X2, [R4, X2])
    vv(f"v_lshl_add_u32 v{X2}, v{D_}, 10, v{X2}", X2, [D_, X2])
    vv(f"v_add_u32 v{vVA}, {KVB}, v{X2}", vVA, [X2])
    vv(f"v_lshrrev_b32 v{X1}, 1, v{CC}", X1, [CC])
    vv(f"v_lshl_or_b32 v{X1}, v{R4}, 2, v{X1}", X1, [R4, X1])
    vv(f"v_lshlrev_b32 v{X2}, 1, v{DH}", X2, [DH])
    vv(f"v_xor_b32 v{X1}, v{X1}, v{X2}", X1, [X1, X2])
    vv(f"v_and_b32 v{X2}, 1, v{CC}", X2, [CC])
    vv(f"v_lshlrev_b32 v{X2}, 3, v{X2}", X2, [X2])
    vv(f"v_lshl_add_u32 v{X1}, v{X1}, 4, v{X2}", X1, [X1, X2])
    vv(f"v_lshl_add_u32 v{X1}, v{R4}, 8, v{X1}", X1, [R4, X1])
    vv(f"v_lshl_add_u32 v{X1}, v{A}, 10, v{X1}", X1, [A, X1])
    e.s(f"s_add_u32 s43, s{sLW}, {KVB}", w=S(43))
    vv(f"v_add_u32 v{vV9}, s43, v{X1}", vV9, [X1])
    e.s(f"s_lshl_b32 s3, s{sWV}, 2", w=S(3))
    vv(f"v_add_u32 v{X1}, s3, v{D_}", X1, [D_])
    vv(f"v_xor_b32 v{X1}, v{X1}, v{Bq}", X1, [X1, Bq])
    vv(f"v_lshlrev_b32 v{X1}, 4, v{X1}", X1, [X1])
    vv(f"v_lshl_add_u32 v{vT2}, v{Bq}, 8, v{X1}", vT2, [Bq, X1])
    vv(f"v_xor_b32 v{X1}, v{D_}, v{Bq}", X1, [D_, Bq])
    vv(f"v_lshlrev_b32 v{X1}, 4, v{X1}", X1, [X1])
    vv(f"v_lshl_add_u32 v{X1}, v{C_}, 8, v{X1}", X1, [C_, X1])
    vv(f"v_add_u32 v{vKA}, {KVB}, v{X1}", vKA, [X1])
    AFB = 64
    def qsync(c):
        if c > 19: return
        e.wait(vm=[('w', c)])
        e.barrier()
    def qrd(k):
        if k >= 40: return
        c, s = divmod(k, 2)
        for u in range(4):
            for ee in range(2):
                e.dsr("ds_read_b64_tr_b16", AFB + 16*(k % 2) + 4*u + 2*ee, 2, vAW + 2*u + ee, wsub(c) + 2048*s, ('a', k, u))
    qsync(0); qrd(0); qrd(1)
    kvq = [(n, u) for n in range(3) for u in range(4)]
    for k in range(40):
        c, s = divmod(k, 2)
        xb = 16 * (c % 4)
        for u in range(4):
            e.wait(lg=[('a', k, u)])
            a = AFB + 16*(k % 2) + 4*u
            e.mfma32(R_QA + 16*u, a, xb + 4*s, None if k == 0 else R_QA + 16*u)
            if u == 0: e.mfma32(R_TA, a, xb + 8 + 4*s, None if k == 0 else R_TA)
            if u == 1 and s == 0:
                qsync(c + 1)
                if c + 1 > 19: e.barrier()
                issue_w(c + 3)
                if kvq and c >= 1:
                    n, uu = kvq.pop(0); issue_kv(n, (uu,))
        qrd(k + 2)
    for k in range(8):
        e.v(f"v_cvt_pk_bf16_f32 v{R_SB+k}, v{R_TA+2*k}, v{R_TA+2*k+1}", w=V(R_SB+k), r=V(R_TA+2*k, 2))
    e.v(f"v_xor_b32 v{T0}, 32, v{vT2}", w=V(T0), r=V(vT2))
    e.wait(lg0=True); e.barrier()
    issue_kv(3, tmp=[T0+1, T0+2])
    e.dsw("ds_write_b128", vT2, R_SB, 4, Q9B); e.dsw("ds_write_b128", T0, R_SB + 4, 4, Q9B)
    for k in range(32):
        e.v(f"v_cvt_pk_bf16_f32 v{R_Q+k}, v{R_QA+2*k}, v{R_QA+2*k+1}", w=V(R_Q+k), r=V(R_QA+2*k, 2))
    NB = 8
    AT = [T0+6, T0+7]
    DT[:] = [T0+4, T0+5]
    reads = []
    mf = []
    atog = [0]
    def addr(base, x, sg=None):
        if sg is None and x == 0: return base
        a = AT[atog[0]]; atog[0] ^= 1
        if sg is not None: vv(f"v_xor_b32 v{a}, s{sg}, v{base}", a, [base])
        else: vv(f"v_xor_b32 v{a}, {x}, v{base}", a, [base])
        return a
    def add_K(n, j):
        sb = slot_of(n); RS = R_SA if j % 2 == 0 else R_SB; s9 = S9A if j % 2 == 0 else S9B
        for s in range(4):
            st = {}
            def rq(d, i, s=s, st=st):
                st['a'] = addr(vK9, 64*s); e.dsr("ds_read_b128", d, 4, st['a'], Q9B, ('r', i))
            def rk(d, i, s=s, st=st):
                a = AT[atog[0]]; atog[0] ^= 1
                vv(f"v_add_u32 v{a}, s43, v{st['a']}", a, [st['a']]); e.dsr("ds_read_b128", d, 4, a, sb, ('r', i))
            reads.append((n, rq)); reads.append((n, rk))
            mf.append(([len(reads)-2, len(reads)-1], lambda r, s=s: e.mfma16(s9, r[1], r[0], None if s == 0 else s9), 0.5))
        for s in range(8):
            st = {}
            def r0(d, i, s=s, st=st):
                st['a'] = addr(vKA, 0, sKX + s); e.dsr("ds_read_b128", d, 4, st['a'], sb, ('r', i))
            def r1(d, i, s=s, st=st): e.dsr("ds_read_b128", d, 4, st['a'], sb + 8192, ('r', i))
            for kt, rf in enumerate((r0, r1)):
                reads.append((n, rf))
                mf.append(([len(reads)-1], lambda r, s=s, kt=kt: e.mfma32(RS + 16*kt, r[0], R_Q + 4*s, None if s == 0 else RS + 16*kt), 1))
    def add_V(n, j):
        sb = slot_of(n); RS = R_SA if j % 2 == 0 else R_SB
        for t in range(0, 8, 2):
            def r9(d, i, t=t):
                for ee in range(2):
                    a = addr(vV9, 32*(t+ee)); e.dsr("ds_read_b64_tr_b16", d + 2*ee, 2, a, sb, ('r', i))
            reads.append((n, r9))
            def m9(r, t=t):
                for ee in range(2): e.mfma16k16(R_O9 + 4*(t+ee), r[0] + 2*ee, P9, None if j == 0 else R_O9 + 4*(t+ee))
            mf.append(([len(reads)-1], m9, 1))
        for s in range(4):
            for t in range(4):
                def rv(d, i, s=s, t=t):
                    a = addr(vVA, 64*t)
                    for ee in range(2): e.dsr("ds_read_b64_tr_b16", d + 2*ee, 2, a, sb + 4096*s + 2048*ee, ('r', i))
                reads.append((n, rv))
                mf.append(([len(reads)-1], lambda r, s=s, t=t: e.mfma32(R_O + 16*t, r[0], RS + 8*s, None if (j == 0 and s == 0) else R_O + 16*t), 1))
    marks = {}
    for n, (kind, j) in enumerate(seq):
        marks[(kind, j)] = len(mf)
        (add_K if kind == 'K' else add_V)(n, j)
    resc = []
    def softmax(j):
        RS = R_SA if j % 2 == 0 else R_SB; s9 = S9A if j % 2 == 0 else S9B
        BM, B2, BM9, B29 = T0, T0+1, T0+2, T0+3
        ops = []
        def o(f): ops.append(f)
        def V_(txt, w, r): o(lambda: e.v(txt, w=w, r=r))
        def P_(txt, a, b): o(lambda: e.ins(txt, 'perm', w=V(a) + V(b), r=V(a) + V(b)))
        V_(f"v_max3_f32 v{BM9}, v{s9}, v{s9+1}, v{s9+2}", V(BM9), V(s9, 3))
        V_(f"v_max_f32 v{BM9}, v{BM9}, v{s9+3}", V(BM9), V(BM9) + V(s9+3))
        V_(f"v_mov_b32 v{B29}, v{BM9}", V(B29), V(BM9))
        V_(f"v_max3_f32 v{BM}, v{RS}, v{RS+1}, v{RS+2}", V(BM), V(RS, 3))
        V_(f"v_max3_f32 v{B2}, v{RS+3}, v{RS+4}, v{RS+5}", V(B2), V(RS+3, 3))
        P_(f"v_permlane32_swap_b32 v{BM9}, v{B29}", BM9, B29)
        k = 6; tog = 0
        while k < 32:
            d = BM if tog == 0 else B2
            V_(f"v_max3_f32 v{d}, v{d}, v{RS+k}, v{RS+k+1}", V(d), V(d) + V(RS+k, 2)); k += 2; tog ^= 1
            if k == 8:
                V_(f"v_max_f32 v{BM9}, v{BM9}, v{B29}", V(BM9), V(BM9) + V(B29))
                V_(f"v_mov_b32 v{B29}, v{BM9}", V(B29), V(BM9))
            if k == 14: P_(f"v_permlane16_swap_b32 v{BM9}, v{B29}", BM9, B29)
            if k == 16: V_(f"v_max_f32 v{BM9}, v{BM9}, v{B29}", V(BM9), V(BM9) + V(B29))
            if k == 18 and j > 0: V_(f"v_sub_f32 v{B29}, v{BM9}, v{M9}", V(B29), V(BM9) + V(M9))
        V_(f"v_max_f32 v{BM}, v{BM}, v{B2}", V(BM), V(BM) + V(B2))
        V_(f"v_mov_b32 v{B2}, v{BM}", V(B2), V(BM))
        ops.append('gap')
        P_(f"v_permlane32_swap_b32 v{BM}, v{B2}", BM, B2)
        V_(f"v_max_f32 v{BM}, v{BM}, v{B2}", V(BM), V(BM) + V(B2))
        if j == 0:
            V_(f"v_mov_b32 v{M_}, v{BM}", V(M_), V(BM)); V_(f"v_mov_b32 v{M9}, v{BM9}", V(M9), V(BM9))
            V_(f"v_mul_f32 v{MC}, s{sC}, v{BM}", V(MC), V(BM)); V_(f"v_mul_f32 v{MC9}, s{sC}, v{BM9}", V(MC9), V(BM9))
        else:
            V_(f"v_sub_f32 v{B2}, v{BM}, v{M_}", V(B2), V(BM) + V(M_))
            V_(f"v_max_f32 v{B2}, v{B2}, v{B29}", V(B2), V(B2) + V(B29))
            V_(f"v_cmp_lt_f32 vcc, s{sTH}, v{B2}", [('vcc', 0)], V(B2))
            ops.append('gap')
            def br():
                e.nop(2); e.s(f"s_cbranch_vccnz {name}_rs{j}"); e.label(f"{name}_rb{j}"); resc.append(j)
            o(br)
        LA, LB = T0, T0+1
        def fma(r, mc): V_(f"v_fma_f32 v{r}, v{r}, s{sC}, -v{mc}", V(r), V(r) + V(mc))
        def ex(r): o(lambda: e.t(f"v_exp_f32 v{r}, v{r}", w=V(r), r=V(r)))
        for k in range(4): fma(s9 + k, MC9)
        for k in range(4): ex(s9 + k)
        need = {}
        for g8 in range(4):
            b0 = RS + 8*g8
            for k in range(8): fma(b0 + k, MC)
            if g8 == 0:
                V_(f"v_add_f32 v{B29}, v{s9}, v{s9+1}", V(B29), V(s9, 2))
                V_(f"v_add_f32 v{BM9}, v{s9+2}, v{s9+3}", V(BM9), V(s9+2, 2))
                V_(f"v_cvt_pk_bf16_f32 v{P9}, v{s9}, v{s9+1}", V(P9), V(s9, 2))
                V_(f"v_cvt_pk_bf16_f32 v{P9+1}, v{s9+2}, v{s9+3}", V(P9+1), V(s9+2, 2))
                if j == 0: V_(f"v_add_f32 v{L9}, v{B29}, v{BM9}", V(L9), V(B29) + V(BM9))
                else:
                    V_(f"v_add_f32 v{B29}, v{B29}, v{BM9}", V(B29), V(B29) + V(BM9))
                    V_(f"v_add_f32 v{L9}, v{L9}, v{B29}", V(L9), V(L9) + V(B29))
                need['t'] = len(ops)
            for k in range(8): ex(b0 + k)
            for k in range(4):
                a, b = b0 + 2*k, b0 + 2*k + 1
                if g8 == 0 and k == 0:
                    if j == 0: V_(f"v_mov_b32 v{L_}, v{a}", V(L_), V(a))
                    else: V_(f"v_add_f32 v{L_}, v{L_}, v{a}", V(L_), V(L_) + V(a))
                    V_(f"v_mov_b32 v{LB}, v{b}", V(LB), V(b))
                else:
                    V_(f"v_add_f32 v{L_}, v{L_}, v{a}", V(L_), V(L_) + V(a)); V_(f"v_add_f32 v{LB}, v{LB}, v{b}", V(LB), V(LB) + V(b))
                V_(f"v_cvt_pk_bf16_f32 v{b0+k}, v{a}, v{b}", V(b0+k), V(a) + V(b))
            need[g8] = len(ops)
        V_(f"v_add_f32 v{L_}, v{L_}, v{LB}", V(L_), V(L_) + V(LB))
        return ops, need
    nm = len(mf)
    plan = [[] for _ in range(nm + 1)]
    for j in range(8):
        ops, need = softmax(j)
        ops = [x for x in ops]
        start = marks[('K', j)] + 21
        if j > 0: start = max(start, marks[('V', j-1)] + (21 if j < 7 else 20))
        v0 = marks[('V', j)]
        dl = [(need['t'], v0), (need[0], v0 + 4), (need[1], v0 + 8), (need[2], v0 + 12), (need[3], v0 + 16), (len(ops), v0 + 18)]
        done = 0
        import math as _m
        for sl in range(start, v0 + 19):
            req = 0
            for cnt, dline in dl:
                if dline >= sl and cnt > done:
                    tot = sum(mf[i-1][2] for i in range(sl, dline + 1))
                    req = max(req, int(_m.ceil((cnt - done) * mf[sl-1][2] / tot - 1e-9)))
            plan[sl] += ops[done:done + req]; done += req
        assert done == len(ops)
    synced = [-1]
    def do_read(i):
        if i >= len(reads): return
        n, fn = reads[i]
        if n > synced[0]:
            e.wait(vm=[('kv', n)], lg0=(n == 0)); e.barrier(); synced[0] = n
            if n >= 2: issue_kv(n + 2)
        fn(R_F + 4*(i % NB), i)
    for i in range(NB): do_read(i)
    nxt = NB
    for i in range(nm):
        for op in plan[i]:
            if op != 'gap': op()
        rd, fn, _ = mf[i]
        e.wait(lg=[('r', x) for x in rd])
        fn([R_F + 4*(x % NB) for x in rd])
        for _x in rd:
            do_read(nxt); nxt += 1
    for op in plan[nm]:
        if op != 'gap': op()
    e.wait(lg0=True); e.barrier()
    X1, X2, X3, X4 = T0, T0+1, T0+2, T0+3
    e.v(f"v_mov_b32 v{X1}, v{L9}", w=V(X1), r=V(L9))
    e.v(f"v_mov_b32 v{X2}, v{L_}", w=V(X2), r=V(L_))
    e.ins(f"v_permlane32_swap_b32 v{L9}, v{X1}", 'perm', w=V(L9) + V(X1), r=V(L9) + V(X1))
    e.ins(f"v_permlane32_swap_b32 v{L_}, v{X2}", 'perm', w=V(L_) + V(X2), r=V(L_) + V(X2))
    e.v(f"v_add_f32 v{L9}, v{L9}, v{X1}", w=V(L9), r=V(L9) + V(X1))
    e.v(f"v_add_f32 v{L_}, v{L_}, v{X2}", w=V(L_), r=V(L_) + V(X2))
    e.v(f"v_mov_b32 v{X1}, v{L9}", w=V(X1), r=V(L9))
    e.t(f"v_rcp_f32 v{L_}, v{L_}", w=V(L_), r=V(L_))
    e.ins(f"v_permlane16_swap_b32 v{L9}, v{X1}", 'perm', w=V(L9) + V(X1), r=V(L9) + V(X1))
    e.v(f"v_add_f32 v{L9}, v{L9}, v{X1}", w=V(L9), r=V(L9) + V(X1))
    q16, gg = X1, X2
    e.v(f"v_and_b32 v{q16}, 15, v{vL}", w=V(q16), r=V(vL))
    e.v(f"v_lshrrev_b32 v{gg}, 4, v{vL}", w=V(gg), r=V(vL))
    e.s(f"s_mul_i32 s3, s{sWV}, 8448", w=S(3)); e.s(f"s_add_u32 s3, s3, {KVB}", w=S(3)); e.s("s_movk_i32 s4, 528", w=S(4))
    e.v(f"v_mul_lo_u32 v{X3}, v{q16}, s4", w=V(X3), r=V(q16))
    e.v(f"v_lshl_add_u32 v{X4}, v{gg}, 4, v{X3}", w=V(X4), r=V(gg) + V(X3))
    e.v(f"v_add_u32 v{X4}, s3, v{X4}", w=V(X4), r=V(X4))
    for t9 in range(8): e.dsw("ds_write_b128", X4, R_O9 + 4*t9, 4, 64*t9)
    e.s(f"s_lshl_b32 s3, s{sWV}, 7", w=S(3)); e.s(f"s_add_u32 s3, s3, {MLB}", w=S(3))
    e.v(f"v_lshlrev_b32 v{X4}, 3, v{q16}", w=V(X4), r=V(q16))
    e.v(f"v_add_u32 v{(T0+5)}, s3, v{X4}", w=V((T0+5)), r=V(X4))
    e.v(f"v_mov_b32 v{M9}, v{MC9}", w=V(M9), r=V(MC9))
    e.dsw("ds_write_b64", (T0+5), M9, 2, 0)
    e.s(f"s_mul_i32 s3, s{sBR}, 72", w=S(3)); e.s(f"s_lshl_b32 s4, s{sB}, 2", w=S(4)); e.s("s_add_u32 s4, s4, s3", w=S(4))
    e.s(f"s_add_u32 s4, s4, s{sWV}", w=S(4)); e.s("s_lshl_b32 s4, s4, 18", w=S(4))
    e.s(f"s_lshl_b32 s5, s{sH}, 13", w=S(5)); e.s(f"s_add_u32 s{sT0}, s4, s5", w=S(sT0))
    e.s(f"s_add_u32 s{sT1}, s{sT0}, 4096", w=S(sT1))
    e.s(f"s_lshr_b32 s4, s{sB}, 1", w=S(4)); e.s("s_add_u32 s4, s4, s3", w=S(4)); e.s("s_add_u32 s4, s4, 64", w=S(4))
    e.s("s_lshl_b32 s4, s4, 18", w=S(4)); e.s(f"s_add_u32 s{sT2}, s4, s5", w=S(sT2))
    e.v(f"v_lshlrev_b32 v{vT2}, 4, v{vL}", w=V(vT2), r=V(vL))
    for ks in range(8):
        b0 = R_O + 8*ks
        for k in range(8): e.v(f"v_mul_f32 v{b0+k}, v{b0+k}, v{L_}", w=V(b0+k), r=V(b0+k) + V(L_))
        for k in range(4): e.v(f"v_cvt_pk_bf16_f32 v{b0+k}, v{b0+2*k}, v{b0+2*k+1}", w=V(b0+k), r=V(b0+2*k, 2))
        e.bstore(b0, 4, vT2, sO, sT0 if ks < 4 else sT1, 1024*(ks % 4))
    e.wait(lg0=True); e.barrier()
    B0 = R_SA
    e.v(f"v_lshlrev_b32 v{X4}, 3, v{q16}", w=V(X4), r=V(q16))
    e.v(f"v_add_u32 v{X4}, {MLB}, v{X4}", w=V(X4), r=V(X4))
    for w_ in range(4): e.dsr("ds_read_b64", B0 + 2*w_, 2, X4, 128*w_, 'ml')
    e.s(f"s_lshl_b32 s3, s{sWV}, 7", w=S(3))
    e.v(f"v_lshl_add_u32 v{X3}, v{gg}, 5, v{X3}", w=V(X3), r=V(gg) + V(X3))
    e.v(f"v_add_u32 v{X3}, s3, v{X3}", w=V(X3), r=V(X3))
    for w_ in range(4):
        for hh in range(2): e.dsr("ds_read_b128", R_F + 8*w_ + 4*hh, 4, X3, KVB + 8448*w_ + 16*hh, 'o9')
    e.wait(lg=['ml'])
    MM, LL = B0 + 8, B0 + 9
    e.v(f"v_max3_f32 v{MM}, v{B0}, v{B0+2}, v{B0+4}", w=V(MM), r=V(B0, 6))
    e.v(f"v_max_f32 v{MM}, v{MM}, v{B0+6}", w=V(MM), r=V(MM) + V(B0+6))
    for w_ in range(4): e.v(f"v_sub_f32 v{B0+2*w_}, v{B0+2*w_}, v{MM}", w=V(B0+2*w_), r=V(B0+2*w_) + V(MM))
    for w_ in range(4): e.t(f"v_exp_f32 v{B0+2*w_}, v{B0+2*w_}", w=V(B0+2*w_), r=V(B0+2*w_))
    e.v(f"v_mul_f32 v{LL}, v{B0}, v{B0+1}", w=V(LL), r=V(B0, 2))
    for w_ in range(1, 4): e.v(f"v_fmac_f32 v{LL}, v{B0+2*w_}, v{B0+2*w_+1}", w=V(LL), r=V(LL) + V(B0+2*w_, 2))
    e.t(f"v_rcp_f32 v{LL}, v{LL}", w=V(LL), r=V(LL))
    for w_ in range(4): e.v(f"v_mul_f32 v{B0+2*w_}, v{B0+2*w_}, v{LL}", w=V(B0+2*w_), r=V(B0+2*w_) + V(LL))
    e.wait(lg0=True)
    for k in range(8):
        e.v(f"v_mul_f32 v{R_F+k}, v{R_F+k}, v{B0}", w=V(R_F+k), r=V(R_F+k) + V(B0))
        for w_ in range(1, 4):
            e.v(f"v_fmac_f32 v{R_F+k}, v{R_F+8*w_+k}, v{B0+2*w_}", w=V(R_F+k), r=V(R_F+k) + V(R_F+8*w_+k) + V(B0+2*w_))
    for k in range(4): e.v(f"v_cvt_pk_bf16_f32 v{R_F+k}, v{R_F+2*k}, v{R_F+2*k+1}", w=V(R_F+k), r=V(R_F+2*k, 2))
    e.s(f"s_and_b32 s3, s{sB}, 1", w=S(3)); e.s("s_lshl_b32 s3, s3, 8", w=S(3))
    e.s(f"s_lshl_b32 s4, s{sWV}, 11", w=S(4)); e.s("s_add_u32 s3, s3, s4", w=S(3))
    e.v(f"v_lshlrev_b32 v{X3}, 9, v{gg}", w=V(X3), r=V(gg))
    e.v(f"v_lshl_add_u32 v{X3}, v{q16}, 4, v{X3}", w=V(X3), r=V(q16) + V(X3))
    e.v(f"v_add_u32 v{X3}, s3, v{X3}", w=V(X3), r=V(X3))
    e.bstore(R_F, 4, X3, sO, sT2, 0)
    e.label(f"{name}_end")
    e.raw("    s_endpgm")
    for j in resc:
        e.label(f"{name}_rs{j}")
        e.nop(16)
        BM, BM9, A1, A9 = T0, T0+2, T0+1, T0+3
        e.v(f"v_max_f32 v{BM}, v{BM}, v{M_}", w=V(BM), r=V(BM) + V(M_))
        e.v(f"v_max_f32 v{BM9}, v{BM9}, v{M9}", w=V(BM9), r=V(BM9) + V(M9))
        e.v(f"v_sub_f32 v{A1}, v{M_}, v{BM}", w=V(A1), r=V(M_) + V(BM))
        e.v(f"v_sub_f32 v{A9}, v{M9}, v{BM9}", w=V(A9), r=V(M9) + V(BM9))
        e.v(f"v_mul_f32 v{A1}, s{sC}, v{A1}", w=V(A1), r=V(A1)); e.v(f"v_mul_f32 v{A9}, s{sC}, v{A9}", w=V(A9), r=V(A9))
        e.t(f"v_exp_f32 v{A1}, v{A1}", w=V(A1), r=V(A1)); e.t(f"v_exp_f32 v{A9}, v{A9}", w=V(A9), r=V(A9))
        e.v(f"v_mov_b32 v{M_}, v{BM}", w=V(M_), r=V(BM)); e.v(f"v_mov_b32 v{M9}, v{BM9}", w=V(M9), r=V(BM9))
        e.v(f"v_mul_f32 v{MC}, s{sC}, v{BM}", w=V(MC), r=V(BM)); e.v(f"v_mul_f32 v{MC9}, s{sC}, v{BM9}", w=V(MC9), r=V(BM9))
        e.v(f"v_mul_f32 v{L_}, v{L_}, v{A1}", w=V(L_), r=V(L_) + V(A1)); e.v(f"v_mul_f32 v{L9}, v{L9}, v{A9}", w=V(L9), r=V(L9) + V(A9))
        for k in range(64): e.v(f"v_mul_f32 v{R_O+k}, v{R_O+k}, v{A1}", w=V(R_O+k), r=V(R_O+k) + V(A1))
        for k in range(32): e.v(f"v_mul_f32 v{R_O9+k}, v{R_O9+k}, v{A9}", w=V(R_O9+k), r=V(R_O9+k) + V(A9))
        e.nop(4)
        e.s(f"s_branch {name}_rb{j}")
    return e.text()
```

```python
from emit import *
from emit import EXP1
import math, struct
def f2u(f): return struct.unpack('<I', struct.pack('<f', f))[0]
CSC = math.log2(math.e) / math.sqrt(128.0)
THR = 8.0 / CSC

SLOT = 16384
KVB = 16384
Q9B = 0
MLB = 4096
LDS1 = 81920
R_O, R_SA, R_SB, R_Q, R_F, R_O9 = 0, 64, 96, 128, 160, 192
R_QA = 160
R_TA = 224
S9A, S9B, P9 = 224, 228, 232
M9, L9, M_, L_, MC, MC9 = 234, 235, 236, 237, 238, 239
T0 = 240
vKA, vVA, vK9, vV9, vDK, vDV, vL, vT2 = 248, 249, 250, 251, 252, 253, 254, 255
vAW, vDW, vX = 96, 104, 106
sK, sV, sW, sO = 12, 16, 20, 24
sWV, sBR, sB, sH, sXO, sWO, sKO, sLW, sC, sTH = 28, 29, 30, 31, 32, 34, 35, 36, 37, 38
sT0, sT1, sT2 = 40, 41, 42
sKX = 44
import os
KVFL = os.environ.get("KVFL", " nt")
WQFL = os.environ.get("WQFL", "")
XFL = os.environ.get("XFL", "")
OSFL = os.environ.get("OSFL", "")
WOPF = os.environ.get("WOPF", "1")
XF = 37748736
WSZ = XF + 6553600
def load_ptrs(e):
    e.s("s_load_dwordx16 s[64:79], s[0:1], 0", w=S(64, 16))
    e.s("s_load_dwordx4 s[80:83], s[0:1], 64", w=S(80, 4))
    e.s("s_load_dwordx2 s[84:85], s[0:1], 80", w=S(84, 2))
    e.s("s_load_dwordx2 s[86:87], s[0:1], 96", w=S(86, 2))

def mk_srd(e, d, a, b, size):
    if b is None:
        e.s(f"s_mov_b32 s{d}, s{a}"); e.s(f"s_and_b32 s{d+1}, s{a+1}, 0xffff")
    else:
        e.s(f"s_cselect_b32 s{d}, s{a}, s{b}"); e.s(f"s_cselect_b32 s{d+1}, s{a+1}, s{b+1}")
    e.s(f"s_mov_b32 s{d+2}, {size}"); e.s(f"s_mov_b32 s{d+3}, 0x00020000")


def gen_k1(name):
    e = Em(); e.abl = True
    e.label(name)
    e.s("s_cmp_ge_u32 s2, 1024"); e.s(f"s_cbranch_scc1 {name}_end")
    load_ptrs(e)
    if 'stamp' in EXP1:
        e.s("s_memtime s[90:91]"); e.s("s_memrealtime s[92:93]"); e.s("s_load_dwordx2 s[88:89], s[0:1], 88")
    def vv(t, w, r=()): e.v(t, w=V(w), r=[x for a in r for x in V(a)])
    vv(f"v_and_b32 v{vL}, 63, v0", vL, [0])
    vv(f"v_lshrrev_b32 v{T0}, 6, v0", T0, [0])
    e.ins(f"v_readfirstlane_b32 s{sWV}, v{T0}", 'rdlane', w=S(sWV), r=V(T0))
    e.s("s_and_b32 s3, s2, 7"); e.s("s_lshr_b32 s4, s2, 3")
    e.s(f"s_lshr_b32 s{sBR}, s3, 2")
    e.s("s_and_b32 s3, s3, 3"); e.s("s_lshl_b32 s3, s3, 3"); e.s("s_and_b32 s5, s4, 7")
    e.s(f"s_add_u32 s{sH}, s3, s5"); e.s(f"s_lshr_b32 s{sB}, s4, 3")
    e.s(f"s_mov_b32 s{sC}, {f2u(CSC)}"); e.s(f"s_mov_b32 s{sTH}, {f2u(THR)}")
    e.s(f"s_lshl_b32 s3, s{sBR}, 4"); e.s(f"s_add_u32 s3, s3, s{sB}"); e.s("s_mul_i32 s3, s3, 204800"); e.s(f"s_add_u32 s{sXO+1}, s3, {XF + 4*40960}")
    e.s(f"s_mul_i32 s4, s{sWV}, 40960", r=S(sWV)); e.s("s_add_u32 s3, s3, s4"); e.s(f"s_add_u32 s{sXO}, s3, {XF}")
    e.s(f"s_lshl_b32 s{sLW}, s{sWV}, 12")
    e.s(f"s_lshl_b32 s3, s{sWV}, 16"); e.s(f"s_lshl_b32 s4, s{sH}, 8"); e.s(f"s_add_u32 s{sWO}, s3, s4")
    e.s(f"s_lshl_b32 s3, s{sB}, 5"); e.s(f"s_add_u32 s3, s3, s{sH}"); e.s("s_lshl_b32 s3, s3, 17")
    e.s(f"s_add_u32 s{sKO}, s3, s{sLW}")
    e.s(f"s_lshl_b32 s39, s{sWV}, 11")
    A, Bq, C_, D_, E_, F_, X1, X2 = [T0 + i for i in range(8)]
    vv(f"v_lshrrev_b32 v{A}, 4, v{vL}", A, [vL])
    vv(f"v_and_b32 v{Bq}, 15, v{vL}", Bq, [vL])
    vv(f"v_xor_b32 v{C_}, v{A}, v{Bq}", C_, [A, Bq])
    vv(f"v_lshlrev_b32 v{C_}, 4, v{C_}", C_, [C_])
    vv(f"v_lshl_add_u32 v{vDK}, v{A}, 8, v{C_}", vDK, [A, C_])
    vv(f"v_lshl_add_u32 v{vK9}, v{Bq}, 8, v{C_}", vK9, [Bq, C_])
    vv(f"v_lshlrev_b32 v{C_}, 2, v{A}", C_, [A])
    vv(f"v_xor_b32 v{C_}, v{C_}, v{Bq}", C_, [C_, Bq])
    vv(f"v_lshlrev_b32 v{C_}, 4, v{C_}", C_, [C_])
    vv(f"v_lshl_add_u32 v{vDV}, v{A}, 8, v{C_}", vDV, [A, C_])
    vv(f"v_lshl_add_u32 v{vDW}, v{A}, 13, v{C_}", vDW, [A, C_])
    vv(f"v_xor_b32 v{vDW+1}, 32, v{vDW}", vDW+1, [vDW])
    vv(f"v_and_b32 v{C_}, 31, v{vL}", C_, [vL])
    vv(f"v_lshrrev_b32 v{D_}, 5, v{vL}", D_, [vL])
    vv(f"v_lshlrev_b32 v{vX}, 4, v{vL}", vX, [vL])
    e.wait(lg0=True)
    e.s(f"s_cmp_eq_u32 s{sBR}, 0")
    mk_srd(e, sK, 66, 76, 67108864); mk_srd(e, sV, 68, 78, 67108864)
    mk_srd(e, sW, 70, 80, 5242880); mk_srd(e, sO, 86, None, WSZ)
    seq = [('K', 0)]
    for j in range(7): seq += [('K', j + 1), ('V', j)]
    seq += [('V', 7)]
    def slot_of(n): return ((n + 1) % 4) * SLOT
    DT = [107, 108]
    def issue_kv(n, us=(0, 1, 2, 3), tmp=None):
        if n > 15: return
        kind, j = seq[n]
        tmp = tmp or DT
        e.s(f"s_add_u32 s{sT0}, s{sKO}, {j*16384}", w=S(sT0))
        e.s(f"s_add_u32 m0, s{sLW}, {KVB + slot_of(n)}", w=[('m0', 0)])
        for u in us:
            x = (64*u) if kind == 'K' else (32*(u & 1))
            base = vDK if kind == 'K' else vDV
            a = base
            if x:
                a = tmp[u & 1]
                vv(f"v_xor_b32 v{a}, {x}, v{base}", a, [base])
            e.dma(a, sK if kind == 'K' else sV, sT0, u*1024, ('kv', n), KVFL)
    def wsub(c): return ((c + 2) % 4) * 8192
    def issue_w(c):
        if c > 19: return
        for u in range(2):
            e.s(f"s_add_u32 s{sT0}, s{sWO}, {c*262144 + u*32768}", w=S(sT0))
            e.s(f"s_add_u32 m0, s39, {wsub(c) + u*1024}", w=[('m0', 0)])
            e.dma(vDW + u, sW, sT0, 0, ('w', c), WQFL)
        e.s(f"s_add_u32 s{sT1}, s{sXO}, {c*2048}", w=S(sT1))
        e.s(f"s_add_u32 s{sT2}, s{sXO+1}, {c*2048}", w=S(sT2))
        b0 = 16 * (c % 4)
        for s in range(2): e.bload(b0 + 4*s, 4, vX, sO, sT1, 1024*s, ('w', c), XFL)
        for s in range(2): e.bload(b0 + 8 + 4*s, 4, vX, sO, sT2, 1024*s, ('w', c), XFL)
    issue_w(0); issue_w(1); issue_w(2)
    R4, CC, DH, LOWC, SUB = E_, F_, 110, 111, 112
    vv(f"v_lshrrev_b32 v{R4}, 2, v{Bq}", R4, [Bq])
    vv(f"v_and_b32 v{CC}, 3, v{vL}", CC, [vL])
    vv(f"v_and_b32 v{DH}, 1, v{A}", DH, [A])
    vv(f"v_and_b32 v{LOWC}, 1, v{CC}", LOWC, [CC])
    vv(f"v_lshl_add_u32 v{LOWC}, v{DH}, 1, v{LOWC}", LOWC, [DH, LOWC])
    vv(f"v_lshrrev_b32 v{SUB}, 1, v{CC}", SUB, [CC])
    vv(f"v_lshlrev_b32 v{SUB}, 3, v{SUB}", SUB, [SUB])
    for u in range(4):
        e.s(f"s_add_u32 s3, s{sWV}, {u}", w=S(3)); e.s("s_and_b32 s3, s3, 3", w=S(3))
        e.s(f"s_lshl_b32 s{sKX+2*u}, s3, 6", w=S(sKX+2*u)); e.s(f"s_xor_b32 s{sKX+2*u+1}, s{sKX+2*u}, 32", w=S(sKX+2*u+1))
        vv(f"v_xor_b32 v{X1}, s3, v{R4}", X1, [R4])
        for ee in range(2):
            d = vAW + 2*u + ee
            vv(f"v_xor_b32 v{X2}, {2*ee}, v{LOWC}", X2, [LOWC])
            vv(f"v_lshl_add_u32 v{X2}, v{X1}, 2, v{X2}", X2, [X1, X2])
            vv(f"v_lshl_add_u32 v{X2}, v{X2}, 4, v{SUB}", X2, [X2, SUB])
            vv(f"v_lshl_add_u32 v{X2}, v{R4}, 8, v{X2}", X2, [R4, X2])
            vv(f"v_lshl_add_u32 v{d}, v{D_}, 12, v{X2}", d, [D_, X2])
            if ee: vv(f"v_add_u32 v{d}, 1024, v{d}", d, [d])
    vv(f"v_lshlrev_b32 v{X2}, 1, v{D_}", X2, [D_])
    vv(f"v_xor_b32 v{X2}, v{X2}, v{LOWC}", X2, [X2, LOWC])
    vv(f"v_lshl_add_u32 v{X2}, v{R4}, 2, v{X2}", X2, [R4, X2])
    vv(f"v_lshl_add_u32 v{X2}, v{X2}, 4, v{SUB}", X2, [X2, SUB])
    vv(f"v_lshl_add_u32 v{X2}, v{R4}, 8, v{X2}", X2, [R4, X2])
    vv(f"v_lshl_add_u32 v{X2}, v{D_}, 10, v{X2}", X2, [D_, X2])
    vv(f"v_add_u32 v{vVA}, {KVB}, v{X2}", vVA, [X2])
    vv(f"v_lshrrev_b32 v{X1}, 1, v{CC}", X1, [CC])
    vv(f"v_lshl_or_b32 v{X1}, v{R4}, 2, v{X1}", X1, [R4, X1])
    vv(f"v_lshlrev_b32 v{X2}, 1, v{DH}", X2, [DH])
    vv(f"v_xor_b32 v{X1}, v{X1}, v{X2}", X1, [X1, X2])
    vv(f"v_and_b32 v{X2}, 1, v{CC}", X2, [CC])
    vv(f"v_lshlrev_b32 v{X2}, 3, v{X2}", X2, [X2])
    vv(f"v_lshl_add_u32 v{X1}, v{X1}, 4, v{X2}", X1, [X1, X2])
    vv(f"v_lshl_add_u32 v{X1}, v{R4}, 8, v{X1}", X1, [R4, X1])
    vv(f"v_lshl_add_u32 v{X1}, v{A}, 10, v{X1}", X1, [A, X1])
    e.s(f"s_add_u32 s43, s{sLW}, {KVB}", w=S(43))
    vv(f"v_add_u32 v{vV9}, s43, v{X1}", vV9, [X1])
    e.s(f"s_lshl_b32 s3, s{sWV}, 2", w=S(3))
    vv(f"v_add_u32 v{X1}, s3, v{D_}", X1, [D_])
    vv(f"v_xor_b32 v{X1}, v{X1}, v{Bq}", X1, [X1, Bq])
    vv(f"v_lshlrev_b32 v{X1}, 4, v{X1}", X1, [X1])
    vv(f"v_lshl_add_u32 v{vT2}, v{Bq}, 8, v{X1}", vT2, [Bq, X1])
    vv(f"v_xor_b32 v{X1}, v{D_}, v{Bq}", X1, [D_, Bq])
    vv(f"v_lshlrev_b32 v{X1}, 4, v{X1}", X1, [X1])
    vv(f"v_lshl_add_u32 v{X1}, v{C_}, 8, v{X1}", X1, [C_, X1])
    vv(f"v_add_u32 v{vKA}, {KVB}, v{X1}", vKA, [X1])
    AFB = 64
    def qsync(c):
        if c > 19: return
        e.wait(vm=[('w', c)])
        e.barrier()
    def qrd(k):
        if k >= 40: return
        c, s = divmod(k, 2)
        for u in range(4):
            for ee in range(2):
                e.dsr("ds_read_b64_tr_b16", AFB + 16*(k % 2) + 4*u + 2*ee, 2, vAW + 2*u + ee, wsub(c) + 2048*s, ('a', k, u))
    qsync(0); qrd(0); qrd(1)
    kvq = [(n, u) for n in range(3) for u in range(4)]
    for k in range(40):
        c, s = divmod(k, 2)
        xb = 16 * (c % 4)
        for u in range(4):
            e.wait(lg=[('a', k, u)])
            a = AFB + 16*(k % 2) + 4*u
            e.mfma32(R_QA + 16*u, a, xb + 4*s, None if k == 0 else R_QA + 16*u)
            if u == 0: e.mfma32(R_TA, a, xb + 8 + 4*s, None if k == 0 else R_TA)
            if u == 1 and s == 0:
                qsync(c + 1)
                if c + 1 > 19: e.barrier()
                issue_w(c + 3)
                if kvq and c >= 1:
                    n, uu = kvq.pop(0); issue_kv(n, (uu,))
        qrd(k + 2)
    for k in range(8):
        e.v(f"v_cvt_pk_bf16_f32 v{R_SB+k}, v{R_TA+2*k}, v{R_TA+2*k+1}", w=V(R_SB+k), r=V(R_TA+2*k, 2))
    e.v(f"v_xor_b32 v{T0}, 32, v{vT2}", w=V(T0), r=V(vT2))
    e.wait(lg0=True); e.barrier()
    issue_kv(3, tmp=[T0+1, T0+2])
    e.dsw("ds_write_b128", vT2, R_SB, 4, Q9B); e.dsw("ds_write_b128", T0, R_SB + 4, 4, Q9B)
    for k in range(32):
        e.v(f"v_cvt_pk_bf16_f32 v{R_Q+k}, v{R_QA+2*k}, v{R_QA+2*k+1}", w=V(R_Q+k), r=V(R_QA+2*k, 2))
    NB = 8
    AT = [T0+6, T0+7]
    DT[:] = [T0+4, T0+5]
    reads = []
    mf = []
    atog = [0]
    def addr(base, x, sg=None):
        if sg is None and x == 0: return base
        a = AT[atog[0]]; atog[0] ^= 1
        if sg is not None: vv(f"v_xor_b32 v{a}, s{sg}, v{base}", a, [base])
        else: vv(f"v_xor_b32 v{a}, {x}, v{base}", a, [base])
        return a
    def add_K(n, j):
        sb = slot_of(n); RS = R_SA if j % 2 == 0 else R_SB; s9 = S9A if j % 2 == 0 else S9B
        for s in range(4):
            st = {}
            def rq(d, i, s=s, st=st):
                st['a'] = addr(vK9, 64*s); e.dsr("ds_read_b128", d, 4, st['a'], Q9B, ('r', i))
            def rk(d, i, s=s, st=st):
                a = AT[atog[0]]; atog[0] ^= 1
                vv(f"v_add_u32 v{a}, s43, v{st['a']}", a, [st['a']]); e.dsr("ds_read_b128", d, 4, a, sb, ('r', i))
            reads.append((n, rq)); reads.append((n, rk))
            mf.append(([len(reads)-2, len(reads)-1], lambda r, s=s: e.mfma16(s9, r[1], r[0], None if s == 0 else s9), 0.5))
        for s in range(8):
            st = {}
            def r0(d, i, s=s, st=st):
                st['a'] = addr(vKA, 0, sKX + s); e.dsr("ds_read_b128", d, 4, st['a'], sb, ('r', i))
            def r1(d, i, s=s, st=st): e.dsr("ds_read_b128", d, 4, st['a'], sb + 8192, ('r', i))
            for kt, rf in enumerate((r0, r1)):
                reads.append((n, rf))
                mf.append(([len(reads)-1], lambda r, s=s, kt=kt: e.mfma32(RS + 16*kt, r[0], R_Q + 4*s, None if s == 0 else RS + 16*kt), 1))
    def add_V(n, j):
        sb = slot_of(n); RS = R_SA if j % 2 == 0 else R_SB
        for t in range(0, 8, 2):
            def r9(d, i, t=t):
                for ee in range(2):
                    a = addr(vV9, 32*(t+ee)); e.dsr("ds_read_b64_tr_b16", d + 2*ee, 2, a, sb, ('r', i))
            reads.append((n, r9))
            def m9(r, t=t):
                for ee in range(2): e.mfma16k16(R_O9 + 4*(t+ee), r[0] + 2*ee, P9, None if j == 0 else R_O9 + 4*(t+ee))
            mf.append(([len(reads)-1], m9, 1))
        for s in range(4):
            for t in range(4):
                def rv(d, i, s=s, t=t):
                    a = addr(vVA, 64*t)
                    for ee in range(2): e.dsr("ds_read_b64_tr_b16", d + 2*ee, 2, a, sb + 4096*s + 2048*ee, ('r', i))
                reads.append((n, rv))
                mf.append(([len(reads)-1], lambda r, s=s, t=t: e.mfma32(R_O + 16*t, r[0], RS + 8*s, None if (j == 0 and s == 0) else R_O + 16*t), 1))
    marks = {}
    for n, (kind, j) in enumerate(seq):
        marks[(kind, j)] = len(mf)
        (add_K if kind == 'K' else add_V)(n, j)
    resc = []
    def softmax(j):
        RS = R_SA if j % 2 == 0 else R_SB; s9 = S9A if j % 2 == 0 else S9B
        BM, B2, BM9, B29 = T0, T0+1, T0+2, T0+3
        ops = []
        def o(f): ops.append(f)
        def V_(txt, w, r): o(lambda: e.v(txt, w=w, r=r))
        def P_(txt, a, b): o(lambda: e.ins(txt, 'perm', w=V(a) + V(b), r=V(a) + V(b)))
        V_(f"v_max3_f32 v{BM9}, v{s9}, v{s9+1}, v{s9+2}", V(BM9), V(s9, 3))
        V_(f"v_max_f32 v{BM9}, v{BM9}, v{s9+3}", V(BM9), V(BM9) + V(s9+3))
        V_(f"v_mov_b32 v{B29}, v{BM9}", V(B29), V(BM9))
        V_(f"v_max3_f32 v{BM}, v{RS}, v{RS+1}, v{RS+2}", V(BM), V(RS, 3))
        V_(f"v_max3_f32 v{B2}, v{RS+3}, v{RS+4}, v{RS+5}", V(B2), V(RS+3, 3))
        P_(f"v_permlane32_swap_b32 v{BM9}, v{B29}", BM9, B29)
        k = 6; tog = 0
        while k < 32:
            d = BM if tog == 0 else B2
            V_(f"v_max3_f32 v{d}, v{d}, v{RS+k}, v{RS+k+1}", V(d), V(d) + V(RS+k, 2)); k += 2; tog ^= 1
            if k == 8:
                V_(f"v_max_f32 v{BM9}, v{BM9}, v{B29}", V(BM9), V(BM9) + V(B29))
                V_(f"v_mov_b32 v{B29}, v{BM9}", V(B29), V(BM9))
            if k == 14: P_(f"v_permlane16_swap_b32 v{BM9}, v{B29}", BM9, B29)
            if k == 16: V_(f"v_max_f32 v{BM9}, v{BM9}, v{B29}", V(BM9), V(BM9) + V(B29))
            if k == 18 and j > 0: V_(f"v_sub_f32 v{B29}, v{BM9}, v{M9}", V(B29), V(BM9) + V(M9))
        V_(f"v_max_f32 v{BM}, v{BM}, v{B2}", V(BM), V(BM) + V(B2))
        V_(f"v_mov_b32 v{B2}, v{BM}", V(B2), V(BM))
        ops.append('gap')
        P_(f"v_permlane32_swap_b32 v{BM}, v{B2}", BM, B2)
        V_(f"v_max_f32 v{BM}, v{BM}, v{B2}", V(BM), V(BM) + V(B2))
        if j == 0:
            V_(f"v_mov_b32 v{M_}, v{BM}", V(M_), V(BM)); V_(f"v_mov_b32 v{M9}, v{BM9}", V(M9), V(BM9))
            V_(f"v_mul_f32 v{MC}, s{sC}, v{BM}", V(MC), V(BM)); V_(f"v_mul_f32 v{MC9}, s{sC}, v{BM9}", V(MC9), V(BM9))
        else:
            V_(f"v_sub_f32 v{B2}, v{BM}, v{M_}", V(B2), V(BM) + V(M_))
            V_(f"v_max_f32 v{B2}, v{B2}, v{B29}", V(B2), V(B2) + V(B29))
            V_(f"v_cmp_lt_f32 vcc, s{sTH}, v{B2}", [('vcc', 0)], V(B2))
            ops.append('gap')
            def br():
                e.nop(2); e.s(f"s_cbranch_vccnz {name}_rs{j}"); e.label(f"{name}_rb{j}"); resc.append(j)
            o(br)
        LA, LB = T0, T0+1
        def fma(r, mc): V_(f"v_fma_f32 v{r}, v{r}, s{sC}, -v{mc}", V(r), V(r) + V(mc))
        def ex(r): o(lambda: e.t(f"v_exp_f32 v{r}, v{r}", w=V(r), r=V(r)))
        for k in range(4): fma(s9 + k, MC9)
        for k in range(4): ex(s9 + k)
        need = {}
        for g8 in range(4):
            b0 = RS + 8*g8
            for k in range(8): fma(b0 + k, MC)
            if g8 == 0:
                V_(f"v_add_f32 v{B29}, v{s9}, v{s9+1}", V(B29), V(s9, 2))
                V_(f"v_add_f32 v{BM9}, v{s9+2}, v{s9+3}", V(BM9), V(s9+2, 2))
                V_(f"v_cvt_pk_bf16_f32 v{P9}, v{s9}, v{s9+1}", V(P9), V(s9, 2))
                V_(f"v_cvt_pk_bf16_f32 v{P9+1}, v{s9+2}, v{s9+3}", V(P9+1), V(s9+2, 2))
                if j == 0: V_(f"v_add_f32 v{L9}, v{B29}, v{BM9}", V(L9), V(B29) + V(BM9))
                else:
                    V_(f"v_add_f32 v{B29}, v{B29}, v{BM9}", V(B29), V(B29) + V(BM9))
                    V_(f"v_add_f32 v{L9}, v{L9}, v{B29}", V(L9), V(L9) + V(B29))
                need['t'] = len(ops)
            for k in range(8): ex(b0 + k)
            for k in range(4):
                a, b = b0 + 2*k, b0 + 2*k + 1
                if g8 == 0 and k == 0:
                    if j == 0: V_(f"v_mov_b32 v{L_}, v{a}", V(L_), V(a))
                    else: V_(f"v_add_f32 v{L_}, v{L_}, v{a}", V(L_), V(L_) + V(a))
                    V_(f"v_mov_b32 v{LB}, v{b}", V(LB), V(b))
                else:
                    V_(f"v_add_f32 v{L_}, v{L_}, v{a}", V(L_), V(L_) + V(a)); V_(f"v_add_f32 v{LB}, v{LB}, v{b}", V(LB), V(LB) + V(b))
                V_(f"v_cvt_pk_bf16_f32 v{b0+k}, v{a}, v{b}", V(b0+k), V(a) + V(b))
            need[g8] = len(ops)
        V_(f"v_add_f32 v{L_}, v{L_}, v{LB}", V(L_), V(L_) + V(LB))
        return ops, need
    nm = len(mf)
    plan = [[] for _ in range(nm + 1)]
    for j in range(8):
        ops, need = softmax(j)
        ops = [x for x in ops]
        start = marks[('K', j)] + 21
        if j > 0: start = max(start, marks[('V', j-1)] + (21 if j < 7 else 20))
        v0 = marks[('V', j)]
        dl = [(need['t'], v0), (need[0], v0 + 4), (need[1], v0 + 8), (need[2], v0 + 12), (need[3], v0 + 16), (len(ops), v0 + 18)]
        done = 0
        import math as _m
        for sl in range(start, v0 + 19):
            req = 0
            for cnt, dline in dl:
                if dline >= sl and cnt > done:
                    tot = sum(mf[i-1][2] for i in range(sl, dline + 1))
                    req = max(req, int(_m.ceil((cnt - done) * mf[sl-1][2] / tot - 1e-9)))
            plan[sl] += ops[done:done + req]; done += req
        assert done == len(ops)
    synced = [-1]
    DELAY = int(os.environ.get('K1DELAY', '2'))
    def do_read(i):
        n, fn = reads[i]
        if n > synced[0]:
            e.wait(vm=[('kv', n)], lg0=True); e.barrier(); synced[0] = n
            if n >= 1: issue_kv(n + 3)
        fn(R_F + 4*(i % NB), i)
    for i in range(NB): do_read(i)
    nxt = NB; free = 0; hold = 0
    for i in range(nm):
        for op in plan[i]:
            if op != 'gap': op()
        rd, fn, _ = mf[i]
        e.wait(lg=[('r', x) for x in rd])
        fn([R_F + 4*(x % NB) for x in rd])
        free += len(rd)
        while free > 0 and nxt < len(reads):
            if reads[nxt][0] > synced[0] and hold < DELAY:
                hold += 1; break
            hold = 0
            do_read(nxt); nxt += 1; free -= 1
    for op in plan[nm]:
        if op != 'gap': op()
    e.wait(lg0=True); e.barrier()
    if WOPF == "1":
        e.s("s_cmp_ge_u32 s2, 512"); e.s(f"s_cbranch_scc1 {name}_nopf")
        e.s("s_cmp_lt_u32 s2, 256")
        mk_srd(e, sW, 72, 82, 5242880)
        e.s("s_and_b32 s3, s2, 255"); e.s("s_mul_i32 s3, s3, 20480"); e.s(f"s_mul_i32 s4, s{sWV}, 5120"); e.s("s_add_u32 s3, s3, s4", w=S(3))
        e.s("s_add_u32 s4, s3, 4096", w=S(4))
        e.v(f"v_lshlrev_b32 v{T0}, 4, v{vL}", w=V(T0), r=V(vL))
        for k in range(4): e.bload(R_Q + 4*k, 4, T0, sW, 3, 1024*k, 'pf')
        e.bload(R_Q + 16, 4, T0, sW, 4, 0, 'pf')
        e.label(f"{name}_nopf")
        e.nop(2)
    X1, X2, X3, X4 = T0, T0+1, T0+2, T0+3
    e.v(f"v_mov_b32 v{X1}, v{L9}", w=V(X1), r=V(L9))
    e.v(f"v_mov_b32 v{X2}, v{L_}", w=V(X2), r=V(L_))
    e.ins(f"v_permlane32_swap_b32 v{L9}, v{X1}", 'perm', w=V(L9) + V(X1), r=V(L9) + V(X1))
    e.ins(f"v_permlane32_swap_b32 v{L_}, v{X2}", 'perm', w=V(L_) + V(X2), r=V(L_) + V(X2))
    e.v(f"v_add_f32 v{L9}, v{L9}, v{X1}", w=V(L9), r=V(L9) + V(X1))
    e.v(f"v_add_f32 v{L_}, v{L_}, v{X2}", w=V(L_), r=V(L_) + V(X2))
    e.v(f"v_mov_b32 v{X1}, v{L9}", w=V(X1), r=V(L9))
    e.t(f"v_rcp_f32 v{L_}, v{L_}", w=V(L_), r=V(L_))
    e.ins(f"v_permlane16_swap_b32 v{L9}, v{X1}", 'perm', w=V(L9) + V(X1), r=V(L9) + V(X1))
    e.v(f"v_add_f32 v{L9}, v{L9}, v{X1}", w=V(L9), r=V(L9) + V(X1))
    q16, gg = X1, X2
    e.v(f"v_and_b32 v{q16}, 15, v{vL}", w=V(q16), r=V(vL))
    e.v(f"v_lshrrev_b32 v{gg}, 4, v{vL}", w=V(gg), r=V(vL))
    e.s(f"s_mul_i32 s3, s{sWV}, 8448", w=S(3)); e.s(f"s_add_u32 s3, s3, {KVB}", w=S(3)); e.s("s_movk_i32 s4, 528", w=S(4))
    e.v(f"v_mul_lo_u32 v{X3}, v{q16}, s4", w=V(X3), r=V(q16))
    e.v(f"v_lshl_add_u32 v{X4}, v{gg}, 4, v{X3}", w=V(X4), r=V(gg) + V(X3))
    e.v(f"v_add_u32 v{X4}, s3, v{X4}", w=V(X4), r=V(X4))
    for t9 in range(8): e.dsw("ds_write_b128", X4, R_O9 + 4*t9, 4, 64*t9)
    e.s(f"s_lshl_b32 s3, s{sWV}, 7", w=S(3)); e.s(f"s_add_u32 s3, s3, {MLB}", w=S(3))
    e.v(f"v_lshlrev_b32 v{X4}, 3, v{q16}", w=V(X4), r=V(q16))
    e.v(f"v_add_u32 v{(T0+5)}, s3, v{X4}", w=V((T0+5)), r=V(X4))
    e.v(f"v_mov_b32 v{M9}, v{MC9}", w=V(M9), r=V(MC9))
    e.dsw("ds_write_b64", (T0+5), M9, 2, 0)
    e.s(f"s_mul_i32 s3, s{sBR}, 72", w=S(3)); e.s(f"s_lshl_b32 s4, s{sB}, 2", w=S(4)); e.s("s_add_u32 s4, s4, s3", w=S(4))
    e.s(f"s_add_u32 s4, s4, s{sWV}", w=S(4)); e.s("s_lshl_b32 s4, s4, 18", w=S(4))
    e.s(f"s_lshl_b32 s5, s{sH}, 13", w=S(5)); e.s(f"s_add_u32 s{sT0}, s4, s5", w=S(sT0))
    e.s(f"s_add_u32 s{sT1}, s{sT0}, 4096", w=S(sT1))
    e.s(f"s_lshr_b32 s4, s{sB}, 1", w=S(4)); e.s("s_add_u32 s4, s4, s3", w=S(4)); e.s("s_add_u32 s4, s4, 64", w=S(4))
    e.s("s_lshl_b32 s4, s4, 18", w=S(4)); e.s(f"s_add_u32 s{sT2}, s4, s5", w=S(sT2))
    e.v(f"v_lshlrev_b32 v{vT2}, 4, v{vL}", w=V(vT2), r=V(vL))
    for ks in range(8):
        b0 = R_O + 8*ks
        for k in range(8): e.v(f"v_mul_f32 v{b0+k}, v{b0+k}, v{L_}", w=V(b0+k), r=V(b0+k) + V(L_))
        for k in range(4): e.v(f"v_cvt_pk_bf16_f32 v{b0+k}, v{b0+2*k}, v{b0+2*k+1}", w=V(b0+k), r=V(b0+2*k, 2))
        e.bstore(b0, 4, vT2, sO, sT0 if ks < 4 else sT1, 1024*(ks % 4), fl=OSFL)
    e.wait(lg0=True); e.barrier()
    B0 = R_SA
    e.v(f"v_lshlrev_b32 v{X4}, 3, v{q16}", w=V(X4), r=V(q16))
    e.v(f"v_add_u32 v{X4}, {MLB}, v{X4}", w=V(X4), r=V(X4))
    for w_ in range(4): e.dsr("ds_read_b64", B0 + 2*w_, 2, X4, 128*w_, 'ml')
    e.s(f"s_lshl_b32 s3, s{sWV}, 7", w=S(3))
    e.v(f"v_lshl_add_u32 v{X3}, v{gg}, 5, v{X3}", w=V(X3), r=V(gg) + V(X3))
    e.v(f"v_add_u32 v{X3}, s3, v{X3}", w=V(X3), r=V(X3))
    for w_ in range(4):
        for hh in range(2): e.dsr("ds_read_b128", R_F + 8*w_ + 4*hh, 4, X3, KVB + 8448*w_ + 16*hh, 'o9')
    e.wait(lg=['ml'])
    MM, LL = B0 + 8, B0 + 9
    e.v(f"v_max3_f32 v{MM}, v{B0}, v{B0+2}, v{B0+4}", w=V(MM), r=V(B0, 6))
    e.v(f"v_max_f32 v{MM}, v{MM}, v{B0+6}", w=V(MM), r=V(MM) + V(B0+6))
    for w_ in range(4): e.v(f"v_sub_f32 v{B0+2*w_}, v{B0+2*w_}, v{MM}", w=V(B0+2*w_), r=V(B0+2*w_) + V(MM))
    for w_ in range(4): e.t(f"v_exp_f32 v{B0+2*w_}, v{B0+2*w_}", w=V(B0+2*w_), r=V(B0+2*w_))
    e.v(f"v_mul_f32 v{LL}, v{B0}, v{B0+1}", w=V(LL), r=V(B0, 2))
    for w_ in range(1, 4): e.v(f"v_fmac_f32 v{LL}, v{B0+2*w_}, v{B0+2*w_+1}", w=V(LL), r=V(LL) + V(B0+2*w_, 2))
    e.t(f"v_rcp_f32 v{LL}, v{LL}", w=V(LL), r=V(LL))
    for w_ in range(4): e.v(f"v_mul_f32 v{B0+2*w_}, v{B0+2*w_}, v{LL}", w=V(B0+2*w_), r=V(B0+2*w_) + V(LL))
    e.wait(lg0=True)
    for k in range(8):
        e.v(f"v_mul_f32 v{R_F+k}, v{R_F+k}, v{B0}", w=V(R_F+k), r=V(R_F+k) + V(B0))
        for w_ in range(1, 4):
            e.v(f"v_fmac_f32 v{R_F+k}, v{R_F+8*w_+k}, v{B0+2*w_}", w=V(R_F+k), r=V(R_F+k) + V(R_F+8*w_+k) + V(B0+2*w_))
    for k in range(4): e.v(f"v_cvt_pk_bf16_f32 v{R_F+k}, v{R_F+2*k}, v{R_F+2*k+1}", w=V(R_F+k), r=V(R_F+2*k, 2))
    e.s(f"s_and_b32 s3, s{sB}, 1", w=S(3)); e.s("s_lshl_b32 s3, s3, 8", w=S(3))
    e.s(f"s_lshl_b32 s4, s{sWV}, 11", w=S(4)); e.s("s_add_u32 s3, s3, s4", w=S(3))
    e.v(f"v_lshlrev_b32 v{X3}, 9, v{gg}", w=V(X3), r=V(gg))
    e.v(f"v_lshl_add_u32 v{X3}, v{q16}, 4, v{X3}", w=V(X3), r=V(q16) + V(X3))
    e.v(f"v_add_u32 v{X3}, s3, v{X3}", w=V(X3), r=V(X3))
    e.bstore(R_F, 4, X3, sO, sT2, 0, fl=OSFL)
    if 'stamp' in EXP1:
        e.s("s_memtime s[94:95]"); e.s("s_memrealtime s[96:97]"); e.s("s_waitcnt lgkmcnt(0)")
        e.s("s_mov_b32 s88, s86"); e.s("s_mov_b32 s89, s87"); e.s("s_sub_u32 s94, s94, s90")
        e.s("s_mov_b32 s90, 0x8000000"); e.s("s_mov_b32 s91, 0x20000")
        e.s("s_lshl_b32 s3, s2, 4"); e.s("s_add_u32 s3, s3, 0x4000000")
        e.s("s_getreg_b32 s4, hwreg(HW_REG_HW_ID)"); e.s("s_getreg_b32 s5, hwreg(HW_REG_XCC_ID)")
        e.s("s_lshl_b32 s5, s5, 28"); e.s("s_and_b32 s4, s4, 0xfffffff"); e.s("s_or_b32 s4, s4, s5")
        e.v("v_mov_b32 v0, s92", w=V(0)); e.v("v_mov_b32 v1, s96", w=V(1)); e.v("v_mov_b32 v2, s94", w=V(2)); e.v("v_mov_b32 v3, s4", w=V(3)); e.v("v_mov_b32 v4, s3", w=V(4))
        e.nop(4)
        e.raw("    buffer_store_dwordx4 v[0:3], v4, s[88:91], 0 offen")
    e.label(f"{name}_end")
    e.raw("    s_endpgm")
    for j in resc:
        e.label(f"{name}_rs{j}")
        e.nop(16)
        BM, BM9, A1, A9 = T0, T0+2, T0+1, T0+3
        e.v(f"v_max_f32 v{BM}, v{BM}, v{M_}", w=V(BM), r=V(BM) + V(M_))
        e.v(f"v_max_f32 v{BM9}, v{BM9}, v{M9}", w=V(BM9), r=V(BM9) + V(M9))
        e.v(f"v_sub_f32 v{A1}, v{M_}, v{BM}", w=V(A1), r=V(M_) + V(BM))
        e.v(f"v_sub_f32 v{A9}, v{M9}, v{BM9}", w=V(A9), r=V(M9) + V(BM9))
        e.v(f"v_mul_f32 v{A1}, s{sC}, v{A1}", w=V(A1), r=V(A1)); e.v(f"v_mul_f32 v{A9}, s{sC}, v{A9}", w=V(A9), r=V(A9))
        e.t(f"v_exp_f32 v{A1}, v{A1}", w=V(A1), r=V(A1)); e.t(f"v_exp_f32 v{A9}, v{A9}", w=V(A9), r=V(A9))
        e.v(f"v_mov_b32 v{M_}, v{BM}", w=V(M_), r=V(BM)); e.v(f"v_mov_b32 v{M9}, v{BM9}", w=V(M9), r=V(BM9))
        e.v(f"v_mul_f32 v{MC}, s{sC}, v{BM}", w=V(MC), r=V(BM)); e.v(f"v_mul_f32 v{MC9}, s{sC}, v{BM9}", w=V(MC9), r=V(BM9))
        e.v(f"v_mul_f32 v{L_}, v{L_}, v{A1}", w=V(L_), r=V(L_) + V(A1)); e.v(f"v_mul_f32 v{L9}, v{L9}, v{A9}", w=V(L9), r=V(L9) + V(A9))
        for k in range(64): e.v(f"v_mul_f32 v{R_O+k}, v{R_O+k}, v{A1}", w=V(R_O+k), r=V(R_O+k) + V(A1))
        for k in range(32): e.v(f"v_mul_f32 v{R_O9+k}, v{R_O9+k}, v{A9}", w=V(R_O9+k), r=V(R_O9+k) + V(A9))
        e.nop(4)
        e.s(f"s_branch {name}_rb{j}")
    return e.text()
```

```python
from emit import *
import os
EXP = os.environ.get('K2EXP', '')
WOFL = os.environ.get('WOFL', '')
OLFL = os.environ.get('OLFL', '')
from k1 import load_ptrs, mk_srd
NR = int(os.environ.get('NR', '8'))
LDS2 = max(147456, 4*NR*4096)
ACC = 256
BB = 0
AF = 160
vAW = 200
vDW = 208
vL, vLO = 210, 211
T0 = 212
RB = 48
NV2 = 448
sW, sO, sOUT = 8, 12, 16
sWV, sBR, sRG, sNG, sWO, sLW = 28, 29, 30, 31, 34, 36
sB0, sB1, sB2, sT0 = 40, 41, 42, 43

def gen_k2(name):
    e = Em()
    e.label(name)
    e.s("s_cmp_ge_u32 s2, 240"); e.s(f"s_cbranch_scc1 {name}_end")
    load_ptrs(e)
    def vv(t, w, r=()): e.v(t, w=V(w), r=[x for a in r for x in V(a)])
    vv(f"v_and_b32 v{vL}, 63, v0", vL, [0])
    vv(f"v_lshrrev_b32 v{T0}, 6, v0", T0, [0])
    e.ins(f"v_readfirstlane_b32 s{sWV}, v{T0}", 'rdlane', w=S(sWV), r=V(T0))
    e.s("s_and_b32 s3, s2, 7"); e.s("s_lshr_b32 s4, s2, 3")
    e.s(f"s_lshr_b32 s{sBR}, s3, 2"); e.s("s_and_b32 s3, s3, 3"); e.s("s_mul_i32 s3, s3, 6")
    e.s("s_mul_i32 s5, s4, 205"); e.s("s_lshr_b32 s5, s5, 10")
    e.s(f"s_add_u32 s{sRG}, s3, s5"); e.s("s_mul_i32 s5, s5, 5"); e.s(f"s_sub_u32 s{sNG}, s4, s5")
    e.s(f"s_mul_i32 s3, s{sWV}, {1024*1280}", r=S(sWV)); e.s(f"s_lshl_b32 s4, s{sNG}, 8"); e.s(f"s_add_u32 s{sWO}, s3, s4")
    e.s(f"s_mul_i32 s{sLW}, s{sWV}, {NR*4096}")
    e.s(f"s_mul_i32 s3, s{sBR}, 72"); e.s(f"s_mul_i32 s4, s{sRG}, 3"); e.s("s_add_u32 s3, s3, s4"); e.s("s_lshl_b32 s3, s3, 18")
    e.s(f"s_lshl_b32 s4, s{sWV}, 16"); e.s(f"s_add_u32 s{sB0}, s3, s4")
    e.s(f"s_add_u32 s{sB1}, s{sB0}, {1<<18}"); e.s(f"s_add_u32 s{sB2}, s{sB0}, {2<<18}")
    A, Bq, C_, D_, R4, CC, DH, LOWC, SUB, X1, X2 = [T0 + i for i in range(11)]
    vv(f"v_lshrrev_b32 v{A}, 4, v{vL}", A, [vL]); vv(f"v_and_b32 v{Bq}, 15, v{vL}", Bq, [vL])
    vv(f"v_lshrrev_b32 v{D_}, 5, v{vL}", D_, [vL])
    e.s("s_movk_i32 s3, 1280", w=S(3))
    vv(f"v_mul_lo_u32 v{X1}, v{A}, s3", X1, [A])
    for ee in range(2):
        vv(f"v_lshlrev_b32 v{C_}, 2, v{A}", C_, [A]); vv(f"v_xor_b32 v{C_}, v{C_}, v{Bq}", C_, [C_, Bq])
        if ee: vv(f"v_xor_b32 v{C_}, 2, v{C_}", C_, [C_])
        vv(f"v_lshl_add_u32 v{vDW+ee}, v{C_}, 4, v{X1}", vDW+ee, [C_, X1])
    vv(f"v_lshlrev_b32 v{vLO}, 4, v{vL}", vLO, [vL])
    e.wait(lg0=True)
    e.s(f"s_cmp_eq_u32 s{sBR}, 0")
    mk_srd(e, sW, 72, 82, 5242880); mk_srd(e, sO, 86, None, 37748736); mk_srd(e, sOUT, 84, None, 5898240)
    def issue(ks):
        if ks >= 64: return
        sl = ks % NR
        for u in range(4):
            e.s(f"s_add_u32 s{sT0}, s{sWO}, {(ks*16 + 4*u)*1280}", w=S(sT0))
            e.s(f"s_add_u32 m0, s{sLW}, {sl*4096 + u*1024}", w=[('m0', 0)])
            if 'nodma' not in EXP: e.dma(vDW + (u & 1), sW, sT0, 0, ('w', ks), WOFL)
        if ks % 4 == 0 and ks > 0:
            for s_ in (sB0, sB1, sB2): e.s(f"s_add_u32 s{s_}, s{s_}, 4096", w=S(s_))
        for rt, s_ in enumerate((sB0, sB1, sB2)):
            if 'nob' not in EXP: e.bload(BB + 12*sl + 4*rt, 4, vLO, sO, s_, 1024*(ks % 4), ('b', ks), OLFL)
    for ks in range(NR - 1): issue(ks)
    vv(f"v_lshrrev_b32 v{R4}, 2, v{Bq}", R4, [Bq]); vv(f"v_and_b32 v{CC}, 3, v{vL}", CC, [vL]); vv(f"v_and_b32 v{DH}, 1, v{A}", DH, [A])
    vv(f"v_and_b32 v{LOWC}, 1, v{CC}", LOWC, [CC]); vv(f"v_lshl_add_u32 v{LOWC}, v{DH}, 1, v{LOWC}", LOWC, [DH, LOWC])
    vv(f"v_lshrrev_b32 v{SUB}, 1, v{CC}", SUB, [CC]); vv(f"v_lshlrev_b32 v{SUB}, 3, v{SUB}", SUB, [SUB])
    vv(f"v_add_u32 v{SUB}, s{sLW}, v{SUB}", SUB, [SUB])
    for t in range(4):
        vv(f"v_xor_b32 v{X1}, {t}, v{R4}", X1, [R4])
        for ee in range(2):
            d = vAW + 2*t + ee
            vv(f"v_xor_b32 v{X2}, {2*ee}, v{LOWC}", X2, [LOWC])
            vv(f"v_lshl_add_u32 v{X2}, v{X1}, 2, v{X2}", X2, [X1, X2])
            vv(f"v_lshl_add_u32 v{X2}, v{X2}, 4, v{SUB}", X2, [X2, SUB])
            vv(f"v_lshl_add_u32 v{X2}, v{R4}, 8, v{X2}", X2, [R4, X2])
            vv(f"v_lshl_add_u32 v{d}, v{D_}, 11, v{X2}", d, [D_, X2])
            if ee: vv(f"v_add_u32 v{d}, 1024, v{d}", d, [d])
    def ard(ks):
        if ks >= 64: return
        e.wait(vm=[('w', ks)])
        for t in range(4):
            for ee in range(2):
                e.dsr("ds_read_b64_tr_b16", AF + 16*(ks % 2) + 4*t + 2*ee, 2, vAW + 2*t + ee, (ks % NR)*4096, ('a', ks, t))
    ard(0)
    for ks in range(64):
        ard(ks + 1)
        issue(ks + NR - 1)
        e.wait(vm=[('b', ks)])
        for t in range(4):
            e.wait(lg=[('a', ks, t)])
            for rt in range(3):
                d = ACC + 16*(rt*4 + t)
                if 'nomfma' not in EXP or ks == 0: e.mfma32(d, AF + 16*(ks % 2) + 4*t, BB + 12*(ks % NR) + 4*rt, None if ks == 0 else d)
    e.wait(lg0=True, vm0=True); e.barrier(); e.nop(16)
    AD = T0
    for nt in range(4):
        e.s(f"s_cmp_eq_u32 s{sWV}, {nt}"); e.s(f"s_cbranch_scc1 {name}_sk{nt}")
        e.s(f"s_sub_u32 s3, s{sWV}, {nt+1}", w=S(3)); e.s("s_and_b32 s3, s3, 3", w=S(3))
        e.s(f"s_mul_i32 s3, s3, 12288", w=S(3)); e.s(f"s_add_u32 s3, s3, {nt*36864}", w=S(3))
        vv(f"v_add_u32 v{AD}, s3, v{vLO}", AD, [vLO])
        for rt in range(3):
            for q4 in range(4):
                e.dsw("ds_write_b128", AD, ACC + 16*(rt*4 + nt) + 4*q4, 4, rt*4096 + q4*1024)
        e.wait(lg0=True)
        e.label(f"{name}_sk{nt}")
        e.nop(2)
    e.wait(lg0=True); e.barrier()
    OWN = BB
    for nt in range(4):
        e.s(f"s_cmp_lg_u32 s{sWV}, {nt}"); e.s(f"s_cbranch_scc1 {name}_mv{nt}")
        for rt in range(3):
            for k in range(16): vv(f"v_accvgpr_read_b32 v{OWN+16*rt+k}, {vr(ACC+16*(rt*4+nt)+k)}", OWN+16*rt+k, [ACC+16*(rt*4+nt)+k])
        e.label(f"{name}_mv{nt}")
        e.nop(2)
    e.s(f"s_mul_i32 s3, s{sWV}, 36864", w=S(3))
    vv(f"v_add_u32 v{AD}, s3, v{vLO}", AD, [vLO])
    for sl in range(3):
        for rt in range(3):
            for q4 in range(4):
                e.dsr("ds_read_b128", RB + 48*sl + 16*rt + 4*q4, 4, AD, sl*12288 + rt*4096 + q4*1024, ('r', sl))
        e.wait(lg0=True)
    for k in range(48):
        vv(f"v_add_f32 v{OWN+k}, v{OWN+k}, v{RB+k}", OWN+k, [OWN+k, RB+k])
        vv(f"v_add_f32 v{RB+48+k}, v{RB+48+k}, v{RB+96+k}", RB+48+k, [RB+48+k, RB+96+k])
    for k in range(48): vv(f"v_add_f32 v{OWN+k}, v{OWN+k}, v{RB+48+k}", OWN+k, [OWN+k, RB+48+k])
    for k in range(24): vv(f"v_cvt_pk_bf16_f32 v{OWN+k}, v{OWN+2*k}, v{OWN+2*k+1}", OWN+k, [OWN+2*k, OWN+2*k+1])
    Q32, ROW, COL = T0+1, T0+2, T0+3
    vv(f"v_and_b32 v{Q32}, 31, v{vL}", Q32, [vL])
    vv(f"v_lshrrev_b32 v{COL}, 5, v{vL}", COL, [vL]); vv(f"v_lshlrev_b32 v{COL}, 4, v{COL}", COL, [COL])
    e.s(f"s_mul_i32 s3, s{sBR}, 1280", w=S(3)); e.s(f"s_lshl_b32 s4, s{sNG}, 8", w=S(4)); e.s("s_add_u32 s3, s3, s4", w=S(3))
    e.s(f"s_lshl_b32 s4, s{sWV}, 6", w=S(4)); e.s("s_add_u32 s3, s3, s4", w=S(3))
    vv(f"v_add_u32 v{COL}, s3, v{COL}", COL, [COL])
    TL = T0 + 4
    vv(f"v_lshrrev_b32 v{TL}, 4, v{Q32}", TL, [Q32]); vv(f"v_mul_u32_u24 v{TL}, 144, v{TL}", TL, [TL])
    vv(f"v_and_b32 v{ROW}, 15, v{Q32}", ROW, [Q32]); vv(f"v_add_u32 v{TL}, v{TL}, v{ROW}", TL, [TL, ROW])
    e.s("s_movk_i32 s7, 2560", w=S(7))
    for rt in range(3):
        e.s(f"s_mul_i32 s3, s{sRG}, 3", w=S(3)); e.s(f"s_add_u32 s3, s3, {rt}", w=S(3))
        e.s("s_lshr_b32 s4, s3, 2", w=S(4)); e.s("s_mul_i32 s4, s4, 144", w=S(4)); e.s("s_and_b32 s5, s3, 3", w=S(5))
        e.s("s_lshl_b32 s5, s5, 5", w=S(5)); e.s("s_add_u32 s4, s4, s5", w=S(4))
        e.s("s_sub_u32 s5, s3, 64", w=S(5)); e.s("s_mul_i32 s5, s5, 288", w=S(5)); e.s("s_add_u32 s5, s5, 128", w=S(5))
        e.s("s_cmp_lt_u32 s3, 64"); e.s("s_cselect_b32 s4, s4, s5", w=S(4)); e.s("s_cselect_b64 vcc, -1, 0", w=[('vcc', 0)])
        e.nop(1)
        e.v(f"v_cndmask_b32 v{ROW}, v{TL}, v{Q32}, vcc", w=V(ROW), r=V(TL) + V(Q32))
        vv(f"v_add_u32 v{ROW}, s4, v{ROW}", ROW, [ROW])
        vv(f"v_mul_lo_u32 v{ROW}, v{ROW}, s7", ROW, [ROW])
        vv(f"v_add_u32 v{T0+5+rt}, v{ROW}, v{COL}", T0+5+rt, [ROW, COL])
        for s1 in range(2): e.bstore(OWN + 8*rt + 4*s1, 4, T0+5+rt, sOUT, "0", 32*s1)
    e.label(f"{name}_end")
    e.raw("    s_endpgm")
    return e.text()
```

```python
from emit import *
import os
EXP = os.environ.get('K2EXP', '')
WOFL = os.environ.get('WOFL', '')
OLFL = os.environ.get('OLFL', '')
from k1 import load_ptrs, mk_srd
NR = int(os.environ.get('NR', '8'))
LDS2 = max(147456, 4*NR*4096)
ACC = 256
BB = 0
AF = 160
vAW = 200
vDW = 208
vL, vLO = 210, 211
T0 = 212
RB = 48
NV2 = 448
sW, sO, sOUT = 8, 12, 16
sWV, sBR, sRG, sNG, sWO, sLW = 28, 29, 30, 31, 34, 36
sB0, sB1, sB2, sT0 = 40, 41, 42, 43

def gen_k2(name):
    e = Em()
    e.label(name)
    e.s("s_cmp_ge_u32 s2, 240"); e.s(f"s_cbranch_scc1 {name}_end")
    load_ptrs(e)
    def vv(t, w, r=()): e.v(t, w=V(w), r=[x for a in r for x in V(a)])
    vv(f"v_and_b32 v{vL}, 63, v0", vL, [0])
    vv(f"v_lshrrev_b32 v{T0}, 6, v0", T0, [0])
    e.ins(f"v_readfirstlane_b32 s{sWV}, v{T0}", 'rdlane', w=S(sWV), r=V(T0))
    e.s("s_and_b32 s3, s2, 7"); e.s("s_lshr_b32 s4, s2, 3")
    e.s(f"s_lshr_b32 s{sBR}, s3, 2"); e.s("s_and_b32 s3, s3, 3"); e.s("s_mul_i32 s3, s3, 6")
    e.s("s_mul_i32 s5, s4, 205"); e.s("s_lshr_b32 s5, s5, 10")
    e.s(f"s_add_u32 s{sRG}, s3, s5"); e.s("s_mul_i32 s5, s5, 5"); e.s(f"s_sub_u32 s{sNG}, s4, s5")
    e.s(f"s_mul_i32 s3, s{sWV}, {1024*1280}", r=S(sWV)); e.s(f"s_lshl_b32 s4, s{sNG}, 8"); e.s(f"s_add_u32 s{sWO}, s3, s4")
    e.s(f"s_mul_i32 s{sLW}, s{sWV}, {NR*4096}")
    e.s(f"s_mul_i32 s3, s{sBR}, 72"); e.s(f"s_mul_i32 s4, s{sRG}, 3"); e.s("s_add_u32 s3, s3, s4"); e.s("s_lshl_b32 s3, s3, 18")
    e.s(f"s_lshl_b32 s4, s{sWV}, 16"); e.s(f"s_add_u32 s{sB0}, s3, s4")
    e.s(f"s_add_u32 s{sB1}, s{sB0}, {1<<18}"); e.s(f"s_add_u32 s{sB2}, s{sB0}, {2<<18}")
    A, Bq, C_, D_, R4, CC, DH, LOWC, SUB, X1, X2 = [T0 + i for i in range(11)]
    vv(f"v_lshrrev_b32 v{A}, 4, v{vL}", A, [vL]); vv(f"v_and_b32 v{Bq}, 15, v{vL}", Bq, [vL])
    vv(f"v_lshrrev_b32 v{D_}, 5, v{vL}", D_, [vL])
    e.s("s_movk_i32 s3, 1280", w=S(3))
    vv(f"v_mul_lo_u32 v{X1}, v{A}, s3", X1, [A])
    for ee in range(2):
        vv(f"v_lshlrev_b32 v{C_}, 2, v{A}", C_, [A]); vv(f"v_xor_b32 v{C_}, v{C_}, v{Bq}", C_, [C_, Bq])
        if ee: vv(f"v_xor_b32 v{C_}, 2, v{C_}", C_, [C_])
        vv(f"v_lshl_add_u32 v{vDW+ee}, v{C_}, 4, v{X1}", vDW+ee, [C_, X1])
    vv(f"v_lshlrev_b32 v{vLO}, 4, v{vL}", vLO, [vL])
    e.wait(lg0=True)
    e.s(f"s_cmp_eq_u32 s{sBR}, 0")
    mk_srd(e, sW, 72, 82, 5242880); mk_srd(e, sO, 86, None, 37748736); mk_srd(e, sOUT, 84, None, 5898240)
    cur = [0]
    def issue(ks):
        if ks >= 64: return
        sl = ks % NR; rel = ks - cur[0]
        for u in range(4):
            e.s(f"s_add_u32 s{sT0}, s{sWO}, {(rel*16 + 4*u)*1280}", w=S(sT0))
            e.s(f"s_add_u32 m0, s{sLW}, {sl*4096 + u*1024}", w=[('m0', 0)])
            if 'nodma' not in EXP: e.dma(vDW + (u & 1), sW, sT0, 0, ('w', ks), WOFL)
        for rt, s_ in enumerate((sB0, sB1, sB2)):
            e.s(f"s_add_u32 s{sT0+1+rt}, s{s_}, {(rel//4)*4096}", w=S(sT0+1+rt))
            if 'nob' not in EXP: e.bload(BB + 12*sl + 4*rt, 4, vLO, sO, sT0+1+rt, 1024*(ks % 4), ('b', ks), OLFL)
    for ks in range(NR - 1): issue(ks)
    for k in range(192): e.v(f"v_accvgpr_write_b32 {vr(ACC+k)}, 0", w=V(ACC+k))
    vv(f"v_lshrrev_b32 v{R4}, 2, v{Bq}", R4, [Bq]); vv(f"v_and_b32 v{CC}, 3, v{vL}", CC, [vL]); vv(f"v_and_b32 v{DH}, 1, v{A}", DH, [A])
    vv(f"v_and_b32 v{LOWC}, 1, v{CC}", LOWC, [CC]); vv(f"v_lshl_add_u32 v{LOWC}, v{DH}, 1, v{LOWC}", LOWC, [DH, LOWC])
    vv(f"v_lshrrev_b32 v{SUB}, 1, v{CC}", SUB, [CC]); vv(f"v_lshlrev_b32 v{SUB}, 3, v{SUB}", SUB, [SUB])
    vv(f"v_add_u32 v{SUB}, s{sLW}, v{SUB}", SUB, [SUB])
    for t in range(4):
        vv(f"v_xor_b32 v{X1}, {t}, v{R4}", X1, [R4])
        for ee in range(2):
            d = vAW + 2*t + ee
            vv(f"v_xor_b32 v{X2}, {2*ee}, v{LOWC}", X2, [LOWC])
            vv(f"v_lshl_add_u32 v{X2}, v{X1}, 2, v{X2}", X2, [X1, X2])
            vv(f"v_lshl_add_u32 v{X2}, v{X2}, 4, v{SUB}", X2, [X2, SUB])
            vv(f"v_lshl_add_u32 v{X2}, v{R4}, 8, v{X2}", X2, [R4, X2])
            vv(f"v_lshl_add_u32 v{d}, v{D_}, 11, v{X2}", d, [D_, X2])
            if ee: vv(f"v_add_u32 v{d}, 1024, v{d}", d, [d])
    def ard(ks):
        if ks >= 64: return
        e.wait(vm=[('w', ks)])
        for t in range(4):
            for ee in range(2):
                e.dsr("ds_read_b64_tr_b16", AF + 16*(ks % 2) + 4*t + 2*ee, 2, vAW + 2*t + ee, (ks % NR)*4096, ('a', ks, t))
    ard(0)
    def body(k0):
        for ks in range(k0, k0 + 8):
            ard(ks + 1)
            issue(ks + NR - 1)
            e.wait(vm=[('b', ks)])
            for t in range(4):
                e.wait(lg=[('a', ks, t)])
                for rt in range(3):
                    d = ACC + 16*(rt*4 + t)
                    e.mfma32(d, AF + 16*(ks % 2) + 4*t, BB + 12*(ks % NR) + 4*rt, d)
    assert NR == 8
    e.s("s_mov_b32 s50, 7")
    e.label(f"{name}_loop")
    body(0)
    e.s(f"s_add_u32 s{sWO}, s{sWO}, {128*1280}")
    for s_ in (sB0, sB1, sB2): e.s(f"s_add_u32 s{s_}, s{s_}, 8192")
    e.s("s_sub_u32 s50, s50, 1"); e.s("s_cmp_lg_u32 s50, 0"); e.s(f"s_cbranch_scc1 {name}_loop")
    def sh(t): return (t[0], t[1] + 48) + tuple(t[2:])
    e.vm = [sh(t) for t in e.vm]; e.lg = [sh(t) for t in e.lg]
    cur[0] = 56
    body(56)
    e.wait(lg0=True, vm0=True); e.barrier(); e.nop(16)
    AD = T0
    for nt in range(4):
        e.s(f"s_cmp_eq_u32 s{sWV}, {nt}"); e.s(f"s_cbranch_scc1 {name}_sk{nt}")
        e.s(f"s_sub_u32 s3, s{sWV}, {nt+1}", w=S(3)); e.s("s_and_b32 s3, s3, 3", w=S(3))
        e.s(f"s_mul_i32 s3, s3, 12288", w=S(3)); e.s(f"s_add_u32 s3, s3, {nt*36864}", w=S(3))
        vv(f"v_add_u32 v{AD}, s3, v{vLO}", AD, [vLO])
        for rt in range(3):
            for q4 in range(4):
                e.dsw("ds_write_b128", AD, ACC + 16*(rt*4 + nt) + 4*q4, 4, rt*4096 + q4*1024)
        e.wait(lg0=True)
        e.label(f"{name}_sk{nt}")
        e.nop(2)
    e.wait(lg0=True); e.barrier()
    OWN = BB
    for nt in range(4):
        e.s(f"s_cmp_lg_u32 s{sWV}, {nt}"); e.s(f"s_cbranch_scc1 {name}_mv{nt}")
        for rt in range(3):
            for k in range(16): vv(f"v_accvgpr_read_b32 v{OWN+16*rt+k}, {vr(ACC+16*(rt*4+nt)+k)}", OWN+16*rt+k, [ACC+16*(rt*4+nt)+k])
        e.label(f"{name}_mv{nt}")
        e.nop(2)
    e.s(f"s_mul_i32 s3, s{sWV}, 36864", w=S(3))
    vv(f"v_add_u32 v{AD}, s3, v{vLO}", AD, [vLO])
    for sl in range(3):
        for rt in range(3):
            for q4 in range(4):
                e.dsr("ds_read_b128", RB + 48*sl + 16*rt + 4*q4, 4, AD, sl*12288 + rt*4096 + q4*1024, ('r', sl))
        e.wait(lg0=True)
    for k in range(48):
        vv(f"v_add_f32 v{OWN+k}, v{OWN+k}, v{RB+k}", OWN+k, [OWN+k, RB+k])
        vv(f"v_add_f32 v{RB+48+k}, v{RB+48+k}, v{RB+96+k}", RB+48+k, [RB+48+k, RB+96+k])
    for k in range(48): vv(f"v_add_f32 v{OWN+k}, v{OWN+k}, v{RB+48+k}", OWN+k, [OWN+k, RB+48+k])
    for k in range(24): vv(f"v_cvt_pk_bf16_f32 v{OWN+k}, v{OWN+2*k}, v{OWN+2*k+1}", OWN+k, [OWN+2*k, OWN+2*k+1])
    Q32, ROW, COL = T0+1, T0+2, T0+3
    vv(f"v_and_b32 v{Q32}, 31, v{vL}", Q32, [vL])
    vv(f"v_lshrrev_b32 v{COL}, 5, v{vL}", COL, [vL]); vv(f"v_lshlrev_b32 v{COL}, 4, v{COL}", COL, [COL])
    e.s(f"s_mul_i32 s3, s{sBR}, 1280", w=S(3)); e.s(f"s_lshl_b32 s4, s{sNG}, 8", w=S(4)); e.s("s_add_u32 s3, s3, s4", w=S(3))
    e.s(f"s_lshl_b32 s4, s{sWV}, 6", w=S(4)); e.s("s_add_u32 s3, s3, s4", w=S(3))
    vv(f"v_add_u32 v{COL}, s3, v{COL}", COL, [COL])
    TL = T0 + 4
    vv(f"v_lshrrev_b32 v{TL}, 4, v{Q32}", TL, [Q32]); vv(f"v_mul_u32_u24 v{TL}, 144, v{TL}", TL, [TL])
    vv(f"v_and_b32 v{ROW}, 15, v{Q32}", ROW, [Q32]); vv(f"v_add_u32 v{TL}, v{TL}, v{ROW}", TL, [TL, ROW])
    e.s("s_movk_i32 s7, 2560", w=S(7))
    for rt in range(3):
        e.s(f"s_mul_i32 s3, s{sRG}, 3", w=S(3)); e.s(f"s_add_u32 s3, s3, {rt}", w=S(3))
        e.s("s_lshr_b32 s4, s3, 2", w=S(4)); e.s("s_mul_i32 s4, s4, 144", w=S(4)); e.s("s_and_b32 s5, s3, 3", w=S(5))
        e.s("s_lshl_b32 s5, s5, 5", w=S(5)); e.s("s_add_u32 s4, s4, s5", w=S(4))
        e.s("s_sub_u32 s5, s3, 64", w=S(5)); e.s("s_mul_i32 s5, s5, 288", w=S(5)); e.s("s_add_u32 s5, s5, 128", w=S(5))
        e.s("s_cmp_lt_u32 s3, 64"); e.s("s_cselect_b32 s4, s4, s5", w=S(4)); e.s("s_cselect_b64 vcc, -1, 0", w=[('vcc', 0)])
        e.nop(1)
        e.v(f"v_cndmask_b32 v{ROW}, v{TL}, v{Q32}, vcc", w=V(ROW), r=V(TL) + V(Q32))
        vv(f"v_add_u32 v{ROW}, s4, v{ROW}", ROW, [ROW])
        vv(f"v_mul_lo_u32 v{ROW}, v{ROW}, s7", ROW, [ROW])
        vv(f"v_add_u32 v{T0+5+rt}, v{ROW}, v{COL}", T0+5+rt, [ROW, COL])
        for s1 in range(2): e.bstore(OWN + 8*rt + 4*s1, 4, T0+5+rt, sOUT, "0", 32*s1)
    e.label(f"{name}_end")
    e.raw("    s_endpgm")
    return e.text()
```

```python
from emit import *
from k1 import load_ptrs, mk_srd, XF, WSZ
def gen_k0(name):
    e = Em()
    e.label(name)
    e.s("s_cmp_ge_u32 s2, 400"); e.s(f"s_cbranch_scc1 {name}_end")
    load_ptrs(e)
    def vv(t, w, r=()): e.v(t, w=V(w), r=[x for a in r for x in V(a)])
    vv("v_and_b32 v1, 63, v0", 1, [0]); vv("v_lshrrev_b32 v2, 6, v0", 2, [0])
    e.ins("v_readfirstlane_b32 s28, v2", 'rdlane', w=S(28), r=V(2))
    e.s("s_lshl_b32 s3, s2, 2"); e.s("s_add_u32 s3, s3, s28", r=S(28))
    e.s("s_mul_i32 s4, s3, 6554"); e.s("s_lshr_b32 s4, s4, 16")
    e.s("s_mul_i32 s5, s4, 10"); e.s("s_sub_u32 s5, s3, s5")
    e.s("s_mul_i32 s6, s4, 13108"); e.s("s_lshr_b32 s6, s6, 16")
    e.s("s_mul_i32 s7, s6, 5"); e.s("s_sub_u32 s7, s4, s7")
    e.s("s_lshr_b32 s29, s6, 4"); e.s("s_and_b32 s6, s6, 15")
    e.s("s_mul_i32 s30, s6, 184320"); e.s("s_lshl_b32 s31, s5, 7"); e.s("s_add_u32 s30, s30, s31")
    e.s("s_mul_i32 s31, s7, 40960"); e.s("s_add_u32 s30, s30, s31")
    e.s("s_lshl_b32 s31, s3, 12"); e.s(f"s_add_u32 s31, s31, {XF}")
    e.s("s_mul_i32 s34, s4, 40960"); e.s(f"s_add_u32 s34, s34, {XF}"); e.s("s_lshl_b32 s35, s5, 11"); e.s("s_add_u32 s34, s34, s35")
    e.s("s_add_u32 s35, s34, 19456"); e.s("s_sub_u32 s36, s34, 1024"); e.s("s_add_u32 s37, s34, 18432")
    e.s("s_cmp_eq_u32 s7, 4"); e.s("s_cselect_b32 s32, 15, 31", w=S(32)); e.s("s_cselect_b32 s38, 16, 0", w=S(38)); e.s("s_movk_i32 s33, 1280", w=S(33))
    for k in range(4): e.s(f"s_cselect_b32 s{34+k}, s{34+k}, s31", w=S(34+k))
    vv("v_and_b32 v2, s32, v1", 2, [1]); vv("v_mul_lo_u32 v2, v2, s33", 2, [2])
    vv("v_lshrrev_b32 v3, 5, v1", 3, [1]); vv("v_lshl_add_u32 v2, v3, 5, v2", 2, [3, 2])
    vv("v_and_b32 v3, s38, v1", 3, [1]); vv("v_add_u32 v2, v2, v3", 2, [2, 3])
    vv("v_lshlrev_b32 v3, 4, v1", 3, [1])
    e.wait(lg0=True)
    e.s("s_cmp_eq_u32 s29, 0")
    mk_srd(e, 8, 64, 74, 2949120); mk_srd(e, 12, 86, None, WSZ)
    for s in range(4): e.bload(4 + 4*s, 4, 2, 8, 30, 64*(s//2) + 16*(s%2), ('x', s))
    for s in range(4):
        e.wait(vm=[('x', s)])
        e.bstore(4 + 4*s, 4, 3, 12, 34 + s, 1024*s)
    e.label(f"{name}_end")
    e.raw("    s_endpgm")
    return e.text()
```

```python
from emit import *
from emit import EXP1
import math, struct
def f2u(f): return struct.unpack('<I', struct.pack('<f', f))[0]
CSC = math.log2(math.e) / math.sqrt(128.0)
THR = 8.0 / CSC

SLOT = 16384
KVB = 16384
Q9B = 0
MLB = 4096
LDS1 = 81920
R_O, R_SA, R_SB, R_Q, R_F, R_O9 = 0, 64, 96, 128, 160, 192
R_QA = 160
R_TA = 224
S9A, S9B, P9 = 224, 228, 232
M9, L9, M_, L_, MC, MC9 = 234, 235, 236, 237, 238, 239
T0 = 240
vKA, vVA, vK9, vV9, vDK, vDV, vL, vT2 = 248, 249, 250, 251, 252, 253, 254, 255
vAW, vDW, vX = 96, 104, 106
sK, sV, sW, sO = 12, 16, 20, 24
sWV, sBR, sB, sH, sXO, sWO, sKO, sLW, sC, sTH = 28, 29, 30, 31, 32, 34, 35, 36, 37, 38
sT0, sT1, sT2 = 40, 41, 42
sKX = 44
import os
KVFL = os.environ.get("KVFL", " nt")
WQFL = os.environ.get("WQFL", "")
XFL = os.environ.get("XFL", "")
OSFL = os.environ.get("OSFL", "")
WOPF = os.environ.get("WOPF", "1")
XF = 37748736
WSZ = XF + 6553600
def load_ptrs(e):
    e.s("s_load_dwordx16 s[64:79], s[0:1], 0", w=S(64, 16))
    e.s("s_load_dwordx4 s[80:83], s[0:1], 64", w=S(80, 4))
    e.s("s_load_dwordx2 s[84:85], s[0:1], 80", w=S(84, 2))
    e.s("s_load_dwordx2 s[86:87], s[0:1], 96", w=S(86, 2))

def mk_srd(e, d, a, b, size):
    if b is None:
        e.s(f"s_mov_b32 s{d}, s{a}"); e.s(f"s_and_b32 s{d+1}, s{a+1}, 0xffff")
    else:
        e.s(f"s_cselect_b32 s{d}, s{a}, s{b}"); e.s(f"s_cselect_b32 s{d+1}, s{a+1}, s{b+1}")
    e.s(f"s_mov_b32 s{d+2}, {size}"); e.s(f"s_mov_b32 s{d+3}, 0x00020000")


def gen_k1(name):
    e = Em(); e.abl = True
    e.label(name)
    e.s("s_cmp_ge_u32 s2, 1024"); e.s(f"s_cbranch_scc1 {name}_end")
    load_ptrs(e)
    PR = os.environ.get('K1PRIO', '')
    if PR:
        lo, hi = PR.split('-')
        e.s(f"s_cmp_lt_u32 s2, {lo}"); e.s(f"s_cbranch_scc1 {name}_np")
        e.s(f"s_cmp_ge_u32 s2, {hi}"); e.s(f"s_cbranch_scc1 {name}_np")
        e.s("s_setprio 2")
        e.label(f"{name}_np")
    if 'stamp' in EXP1:
        e.s("s_memtime s[90:91]"); e.s("s_memrealtime s[92:93]"); e.s("s_load_dwordx2 s[88:89], s[0:1], 88")
    def vv(t, w, r=()): e.v(t, w=V(w), r=[x for a in r for x in V(a)])
    vv(f"v_and_b32 v{vL}, 63, v0", vL, [0])
    vv(f"v_lshrrev_b32 v{T0}, 6, v0", T0, [0])
    e.ins(f"v_readfirstlane_b32 s{sWV}, v{T0}", 'rdlane', w=S(sWV), r=V(T0))
    e.s("s_and_b32 s3, s2, 7"); e.s("s_lshr_b32 s4, s2, 3")
    e.s(f"s_lshr_b32 s{sBR}, s3, 2")
    e.s("s_and_b32 s3, s3, 3"); e.s("s_lshl_b32 s3, s3, 3"); e.s("s_and_b32 s5, s4, 7")
    e.s(f"s_add_u32 s{sH}, s3, s5"); e.s(f"s_lshr_b32 s{sB}, s4, 3")
    e.s(f"s_mov_b32 s{sC}, {f2u(CSC)}"); e.s(f"s_mov_b32 s{sTH}, {f2u(THR)}")
    e.s(f"s_lshl_b32 s3, s{sBR}, 4"); e.s(f"s_add_u32 s3, s3, s{sB}"); e.s("s_mul_i32 s3, s3, 204800"); e.s(f"s_add_u32 s{sXO+1}, s3, {XF + 4*40960}")
    e.s(f"s_mul_i32 s4, s{sWV}, 40960", r=S(sWV)); e.s("s_add_u32 s3, s3, s4"); e.s(f"s_add_u32 s{sXO}, s3, {XF}")
    e.s(f"s_lshl_b32 s{sLW}, s{sWV}, 12")
    e.s(f"s_lshl_b32 s3, s{sWV}, 16"); e.s(f"s_lshl_b32 s4, s{sH}, 8"); e.s(f"s_add_u32 s{sWO}, s3, s4")
    e.s(f"s_lshl_b32 s3, s{sB}, 5"); e.s(f"s_add_u32 s3, s3, s{sH}"); e.s("s_lshl_b32 s3, s3, 17")
    e.s(f"s_add_u32 s{sKO}, s3, s{sLW}")
    e.s(f"s_lshl_b32 s39, s{sWV}, 11")
    A, Bq, C_, D_, E_, F_, X1, X2 = [T0 + i for i in range(8)]
    vv(f"v_lshrrev_b32 v{A}, 4, v{vL}", A, [vL])
    vv(f"v_and_b32 v{Bq}, 15, v{vL}", Bq, [vL])
    vv(f"v_xor_b32 v{C_}, v{A}, v{Bq}", C_, [A, Bq])
    vv(f"v_lshlrev_b32 v{C_}, 4, v{C_}", C_, [C_])
    vv(f"v_lshl_add_u32 v{vDK}, v{A}, 8, v{C_}", vDK, [A, C_])
    vv(f"v_lshl_add_u32 v{vK9}, v{Bq}, 8, v{C_}", vK9, [Bq, C_])
    vv(f"v_lshlrev_b32 v{C_}, 2, v{A}", C_, [A])
    vv(f"v_xor_b32 v{C_}, v{C_}, v{Bq}", C_, [C_, Bq])
    vv(f"v_lshlrev_b32 v{C_}, 4, v{C_}", C_, [C_])
    vv(f"v_lshl_add_u32 v{vDV}, v{A}, 8, v{C_}", vDV, [A, C_])
    vv(f"v_lshl_add_u32 v{vDW}, v{A}, 13, v{C_}", vDW, [A, C_])
    vv(f"v_xor_b32 v{vDW+1}, 32, v{vDW}", vDW+1, [vDW])
    vv(f"v_and_b32 v{C_}, 31, v{vL}", C_, [vL])
    vv(f"v_lshrrev_b32 v{D_}, 5, v{vL}", D_, [vL])
    vv(f"v_lshlrev_b32 v{vX}, 4, v{vL}", vX, [vL])
    e.wait(lg0=True)
    e.s(f"s_cmp_eq_u32 s{sBR}, 0")
    mk_srd(e, sK, 66, 76, 67108864); mk_srd(e, sV, 68, 78, 67108864)
    mk_srd(e, sW, 70, 80, 5242880); mk_srd(e, sO, 86, None, WSZ)
    seq = [('K', 0)]
    for j in range(7): seq += [('K', j + 1), ('V', j)]
    seq += [('V', 7)]
    def slot_of(n): return ((n + 3) % 4) * SLOT
    DT = [107, 108]
    def issue_kv(n, us=(0, 1, 2, 3), tmp=None):
        if n > 15: return
        kind, j = seq[n]
        tmp = tmp or DT
        e.s(f"s_add_u32 s{sT0}, s{sKO}, {j*16384}", w=S(sT0))
        e.s(f"s_add_u32 m0, s{sLW}, {KVB + slot_of(n)}", w=[('m0', 0)])
        for u in us:
            x = (64*u) if kind == 'K' else (32*(u & 1))
            base = vDK if kind == 'K' else vDV
            a = base
            if x:
                a = tmp[u & 1]
                vv(f"v_xor_b32 v{a}, {x}, v{base}", a, [base])
            e.dma(a, sK if kind == 'K' else sV, sT0, u*1024, ('kv', n), KVFL)
    def wsub(c): return (16384 + ((c - 12) % 8) * 8192) % 65536
    QD = 6
    XBUF = [0, 12, 24, 36, 48, 116, 128]
    R_TO = 144
    def issue_w(c):
        if c > 19: return
        for u in range(2):
            e.s(f"s_add_u32 s{sT0}, s{sWO}, {c*262144 + u*32768}", w=S(sT0))
            e.s(f"s_add_u32 m0, s39, {wsub(c) + u*1024}", w=[('m0', 0)])
            if 'nowd' not in EXP1: e.dma(vDW + u, sW, sT0, 0, ('w', c), WQFL)
        e.s(f"s_add_u32 s{sT1}, s{sXO}, {c*2048}", w=S(sT1))
        e.s(f"s_add_u32 s{sT2}, s{sXO+1}, {c*1024}", w=S(sT2))
        b0 = XBUF[c % 7]
        for s in range(2): e.bload(b0 + 4*s, 4, vX, sO, sT1, 1024*s, ('w', c), XFL)
        e.bload(b0 + 8, 4, vX, sO, sT2, 0, ('w', c), XFL)
    for c in range(QD): issue_w(c)
    issue_kv(0)
    if os.environ.get('K1TOUCH', '0') == '1':
        e.s(f"s_add_u32 m0, s{sLW}, {KVB + 3*SLOT}", w=[('m0', 0)])
        e.s(f"s_and_b32 s3, s{sH}, 7", w=S(3)); e.s("s_mul_i32 s3, s3, 25600", w=S(3)); e.s(f"s_mul_i32 s4, s{sWV}, 6400", w=S(4))
        e.s("s_add_u32 s3, s3, s4", w=S(3)); e.s(f"s_add_u32 s3, s3, s{sXO+1}", w=S(3)); e.s(f"s_sub_u32 s3, s3, {4*40960}", w=S(3))
        e.s("s_add_u32 s4, s3, 3072", w=S(4))
        for k in range(3): e.dma(vX, sO, 3, 1024*k, 'touch')
        for k in range(4): e.dma(vX, sO, 4, 1024*k, 'touch')
        e.s(f"s_and_b32 s3, s{sB}, 7", w=S(3)); e.s("s_mul_i32 s3, s3, 80", w=S(3)); e.s(f"s_mul_i32 s4, s{sWV}, 20", w=S(4))
        e.s("s_add_u32 s3, s3, s4", w=S(3)); e.s("s_lshl_b32 s3, s3, 13", w=S(3)); e.s(f"s_lshl_b32 s4, s{sH}, 8", w=S(4)); e.s("s_add_u32 s3, s3, s4", w=S(3))
        for k in range(5):
            e.dma(vDW, sW, 3, 0, 'touch')
            if k < 4: e.s("s_add_u32 s3, s3, 32768", w=S(3))
    R4, CC, DH, LOWC, SUB = E_, F_, 110, 111, 112
    vv(f"v_lshrrev_b32 v{R4}, 2, v{Bq}", R4, [Bq])
    vv(f"v_and_b32 v{CC}, 3, v{vL}", CC, [vL])
    vv(f"v_and_b32 v{DH}, 1, v{A}", DH, [A])
    vv(f"v_and_b32 v{LOWC}, 1, v{CC}", LOWC, [CC])
    vv(f"v_lshl_add_u32 v{LOWC}, v{DH}, 1, v{LOWC}", LOWC, [DH, LOWC])
    vv(f"v_lshrrev_b32 v{SUB}, 1, v{CC}", SUB, [CC])
    vv(f"v_lshlrev_b32 v{SUB}, 3, v{SUB}", SUB, [SUB])
    for u in range(4):
        e.s(f"s_add_u32 s3, s{sWV}, {u}", w=S(3)); e.s("s_and_b32 s3, s3, 3", w=S(3))
        e.s(f"s_lshl_b32 s{sKX+2*u}, s3, 6", w=S(sKX+2*u)); e.s(f"s_xor_b32 s{sKX+2*u+1}, s{sKX+2*u}, 32", w=S(sKX+2*u+1))
        vv(f"v_xor_b32 v{X1}, s3, v{R4}", X1, [R4])
        for ee in range(2):
            d = vAW + 2*u + ee
            vv(f"v_xor_b32 v{X2}, {2*ee}, v{LOWC}", X2, [LOWC])
            vv(f"v_lshl_add_u32 v{X2}, v{X1}, 2, v{X2}", X2, [X1, X2])
            vv(f"v_lshl_add_u32 v{X2}, v{X2}, 4, v{SUB}", X2, [X2, SUB])
            vv(f"v_lshl_add_u32 v{X2}, v{R4}, 8, v{X2}", X2, [R4, X2])
            vv(f"v_lshl_add_u32 v{d}, v{D_}, 12, v{X2}", d, [D_, X2])
            if ee: vv(f"v_add_u32 v{d}, 1024, v{d}", d, [d])
    vv(f"v_lshlrev_b32 v{X2}, 1, v{D_}", X2, [D_])
    vv(f"v_xor_b32 v{X2}, v{X2}, v{LOWC}", X2, [X2, LOWC])
    vv(f"v_lshl_add_u32 v{X2}, v{R4}, 2, v{X2}", X2, [R4, X2])
    vv(f"v_lshl_add_u32 v{X2}, v{X2}, 4, v{SUB}", X2, [X2, SUB])
    vv(f"v_lshl_add_u32 v{X2}, v{R4}, 8, v{X2}", X2, [R4, X2])
    vv(f"v_lshl_add_u32 v{X2}, v{D_}, 10, v{X2}", X2, [D_, X2])
    vv(f"v_add_u32 v{vVA}, {KVB}, v{X2}", vVA, [X2])
    vv(f"v_lshrrev_b32 v{X1}, 1, v{CC}", X1, [CC])
    vv(f"v_lshl_or_b32 v{X1}, v{R4}, 2, v{X1}", X1, [R4, X1])
    vv(f"v_lshlrev_b32 v{X2}, 1, v{DH}", X2, [DH])
    vv(f"v_xor_b32 v{X1}, v{X1}, v{X2}", X1, [X1, X2])
    vv(f"v_and_b32 v{X2}, 1, v{CC}", X2, [CC])
    vv(f"v_lshlrev_b32 v{X2}, 3, v{X2}", X2, [X2])
    vv(f"v_lshl_add_u32 v{X1}, v{X1}, 4, v{X2}", X1, [X1, X2])
    vv(f"v_lshl_add_u32 v{X1}, v{R4}, 8, v{X1}", X1, [R4, X1])
    vv(f"v_lshl_add_u32 v{X1}, v{A}, 10, v{X1}", X1, [A, X1])
    e.s(f"s_add_u32 s43, s{sLW}, {KVB}", w=S(43))
    vv(f"v_add_u32 v{vV9}, s43, v{X1}", vV9, [X1])
    e.s(f"s_lshl_b32 s3, s{sWV}, 2", w=S(3))
    vv(f"v_add_u32 v{X1}, s3, v{D_}", X1, [D_])
    vv(f"v_xor_b32 v{X1}, v{X1}, v{Bq}", X1, [X1, Bq])
    vv(f"v_lshlrev_b32 v{X1}, 4, v{X1}", X1, [X1])
    vv(f"v_lshl_add_u32 v{vT2}, v{Bq}, 8, v{X1}", vT2, [Bq, X1])
    vv(f"v_xor_b32 v{X1}, v{D_}, v{Bq}", X1, [D_, Bq])
    vv(f"v_lshlrev_b32 v{X1}, 4, v{X1}", X1, [X1])
    vv(f"v_lshl_add_u32 v{X1}, v{C_}, 8, v{X1}", X1, [C_, X1])
    vv(f"v_add_u32 v{vKA}, {KVB}, v{X1}", vKA, [X1])
    AFB = 64
    def qsync(c):
        if c > 19: return
        e.wait(vm=[('w', c)])
        e.barrier()
    def qrd(k):
        if k >= 40: return
        c, s = divmod(k, 2)
        for u in range(4):
            for ee in range(2):
                e.dsr("ds_read_b64_tr_b16", AFB + 16*(k % 2) + 4*u + 2*ee, 2, vAW + 2*u + ee, wsub(c) + 2048*s, ('a', k, u))
    qsync(0); qrd(0); qrd(1)
    for k in range(40):
        c, s = divmod(k, 2)
        xb = XBUF[c % 7]
        for u in range(4):
            e.wait(lg=[('a', k, u)])
            a = AFB + 16*(k % 2) + 4*u
            e.mfma32(R_QA + 16*u, a, xb + 4*s, None if k == 0 else R_QA + 16*u)
            if u == 0:
                ta = R_TA if s == 0 else R_TO
                e.mfma32(ta, a, xb + 8, None if k < 2 else ta)
            if u == 1 and s == 0:
                qsync(c + 1)
                if c + 1 > 19: e.barrier()
                issue_w(c + QD)
                if c in (14, 16, 18): issue_kv((c - 12) // 2)
        qrd(k + 2)
    if 'stamp' in EXP1: e.s('s_memrealtime s[98:99]'); e.wait(lg0=True)
    TT = 64
    for k in range(16): e.v(f"v_mov_b32 v{TT+k}, v{R_TA+k}", w=V(TT+k), r=V(R_TA+k))
    for k in range(16): e.ins(f"v_permlane16_swap_b32 v{R_TO+k}, v{TT+k}", 'perm', w=V(R_TO+k) + V(TT+k), r=V(R_TO+k) + V(TT+k))
    for k in range(16): e.v(f"v_add_f32 v{R_TA+k}, v{R_TA+k}, v{TT+k}", w=V(R_TA+k), r=V(R_TA+k) + V(TT+k))
    for k in range(8):
        e.v(f"v_cvt_pk_bf16_f32 v{R_SB+k}, v{R_TA+2*k}, v{R_TA+2*k+1}", w=V(R_SB+k), r=V(R_TA+2*k, 2))
    e.v(f"v_xor_b32 v{T0}, 32, v{vT2}", w=V(T0), r=V(vT2))
    e.wait(lg0=True); e.barrier()
    e.s("s_mov_b32 exec_lo, 0xffff"); e.s("s_mov_b32 exec_hi, 0xffff"); e.nop(1)
    e.dsw("ds_write_b128", vT2, R_SB, 4, Q9B); e.dsw("ds_write_b128", T0, R_SB + 4, 4, Q9B)
    e.s("s_mov_b64 exec, -1"); e.nop(1)
    for k in range(32):
        e.v(f"v_cvt_pk_bf16_f32 v{R_Q+k}, v{R_QA+2*k}, v{R_QA+2*k+1}", w=V(R_Q+k), r=V(R_QA+2*k, 2))
    NB = 8
    AT = [T0+6, T0+7]
    DT[:] = [T0+4, T0+5]
    reads = []
    mf = []
    atog = [0]
    def addr(base, x, sg=None):
        if sg is None and x == 0: return base
        a = AT[atog[0]]; atog[0] ^= 1
        if sg is not None: vv(f"v_xor_b32 v{a}, s{sg}, v{base}", a, [base])
        else: vv(f"v_xor_b32 v{a}, {x}, v{base}", a, [base])
        return a
    def add_K(n, j):
        sb = slot_of(n); RS = R_SA if j % 2 == 0 else R_SB; s9 = S9A if j % 2 == 0 else S9B
        for s in range(4):
            st = {}
            def rq(d, i, s=s, st=st):
                st['a'] = addr(vK9, 64*s); e.dsr("ds_read_b128", d, 4, st['a'], Q9B, ('r', i))
            def rk(d, i, s=s, st=st):
                a = AT[atog[0]]; atog[0] ^= 1
                vv(f"v_add_u32 v{a}, s43, v{st['a']}", a, [st['a']]); e.dsr("ds_read_b128", d, 4, a, sb, ('r', i))
            reads.append((n, rq)); reads.append((n, rk))
            mf.append(([len(reads)-2, len(reads)-1], lambda r, s=s: e.mfma16(s9, r[1], r[0], None if s == 0 else s9), 0.5))
        for s in range(8):
            st = {}
            def r0(d, i, s=s, st=st):
                st['a'] = addr(vKA, 0, sKX + s); e.dsr("ds_read_b128", d, 4, st['a'], sb, ('r', i))
            def r1(d, i, s=s, st=st): e.dsr("ds_read_b128", d, 4, st['a'], sb + 8192, ('r', i))
            for kt, rf in enumerate((r0, r1)):
                reads.append((n, rf))
                mf.append(([len(reads)-1], lambda r, s=s, kt=kt: e.mfma32(RS + 16*kt, r[0], R_Q + 4*s, None if s == 0 else RS + 16*kt), 1))
    def add_V(n, j):
        sb = slot_of(n); RS = R_SA if j % 2 == 0 else R_SB
        for t in range(0, 8, 2):
            def r9(d, i, t=t):
                for ee in range(2):
                    a = addr(vV9, 32*(t+ee)); e.dsr("ds_read_b64_tr_b16", d + 2*ee, 2, a, sb, ('r', i))
            reads.append((n, r9))
            def m9(r, t=t):
                for ee in range(2): e.mfma16k16(R_O9 + 4*(t+ee), r[0] + 2*ee, P9, None if j == 0 else R_O9 + 4*(t+ee))
            mf.append(([len(reads)-1], m9, 1))
        for s in range(4):
            for t in range(4):
                def rv(d, i, s=s, t=t):
                    a = addr(vVA, 64*t)
                    for ee in range(2): e.dsr("ds_read_b64_tr_b16", d + 2*ee, 2, a, sb + 4096*s + 2048*ee, ('r', i))
                reads.append((n, rv))
                mf.append(([len(reads)-1], lambda r, s=s, t=t: e.mfma32(R_O + 16*t, r[0], RS + 8*s, None if (j == 0 and s == 0) else R_O + 16*t), 1))
    marks = {}
    for n, (kind, j) in enumerate(seq):
        marks[(kind, j)] = len(mf)
        (add_K if kind == 'K' else add_V)(n, j)
    resc = []
    def softmax(j):
        RS = R_SA if j % 2 == 0 else R_SB; s9 = S9A if j % 2 == 0 else S9B
        BM, B2, BM9, B29 = T0, T0+1, T0+2, T0+3
        ops = []
        def o(f): ops.append(f)
        def V_(txt, w, r): o(lambda: e.v(txt, w=w, r=r))
        def P_(txt, a, b): o(lambda: e.ins(txt, 'perm', w=V(a) + V(b), r=V(a) + V(b)))
        V_(f"v_max3_f32 v{BM9}, v{s9}, v{s9+1}, v{s9+2}", V(BM9), V(s9, 3))
        V_(f"v_max_f32 v{BM9}, v{BM9}, v{s9+3}", V(BM9), V(BM9) + V(s9+3))
        V_(f"v_mov_b32 v{B29}, v{BM9}", V(B29), V(BM9))
        V_(f"v_max3_f32 v{BM}, v{RS}, v{RS+1}, v{RS+2}", V(BM), V(RS, 3))
        V_(f"v_max3_f32 v{B2}, v{RS+3}, v{RS+4}, v{RS+5}", V(B2), V(RS+3, 3))
        P_(f"v_permlane32_swap_b32 v{BM9}, v{B29}", BM9, B29)
        k = 6; tog = 0
        while k < 32:
            d = BM if tog == 0 else B2
            V_(f"v_max3_f32 v{d}, v{d}, v{RS+k}, v{RS+k+1}", V(d), V(d) + V(RS+k, 2)); k += 2; tog ^= 1
            if k == 8:
                V_(f"v_max_f32 v{BM9}, v{BM9}, v{B29}", V(BM9), V(BM9) + V(B29))
                V_(f"v_mov_b32 v{B29}, v{BM9}", V(B29), V(BM9))
            if k == 14: P_(f"v_permlane16_swap_b32 v{BM9}, v{B29}", BM9, B29)
            if k == 16: V_(f"v_max_f32 v{BM9}, v{BM9}, v{B29}", V(BM9), V(BM9) + V(B29))
            if k == 18 and j > 0: V_(f"v_sub_f32 v{B29}, v{BM9}, v{M9}", V(B29), V(BM9) + V(M9))
        V_(f"v_max_f32 v{BM}, v{BM}, v{B2}", V(BM), V(BM) + V(B2))
        V_(f"v_mov_b32 v{B2}, v{BM}", V(B2), V(BM))
        ops.append('gap')
        P_(f"v_permlane32_swap_b32 v{BM}, v{B2}", BM, B2)
        V_(f"v_max_f32 v{BM}, v{BM}, v{B2}", V(BM), V(BM) + V(B2))
        if j == 0:
            V_(f"v_mov_b32 v{M_}, v{BM}", V(M_), V(BM)); V_(f"v_mov_b32 v{M9}, v{BM9}", V(M9), V(BM9))
            V_(f"v_mul_f32 v{MC}, s{sC}, v{BM}", V(MC), V(BM)); V_(f"v_mul_f32 v{MC9}, s{sC}, v{BM9}", V(MC9), V(BM9))
        else:
            V_(f"v_sub_f32 v{B2}, v{BM}, v{M_}", V(B2), V(BM) + V(M_))
            V_(f"v_max_f32 v{B2}, v{B2}, v{B29}", V(B2), V(B2) + V(B29))
            V_(f"v_cmp_lt_f32 vcc, s{sTH}, v{B2}", [('vcc', 0)], V(B2))
            ops.append('gap')
            def br():
                e.nop(2); e.s(f"s_cbranch_vccnz {name}_rs{j}"); e.label(f"{name}_rb{j}"); resc.append(j)
            o(br)
        LA, LB = T0, T0+1
        def fma(r, mc): V_(f"v_fma_f32 v{r}, v{r}, s{sC}, -v{mc}", V(r), V(r) + V(mc))
        def ex(r): o(lambda: e.t(f"v_exp_f32 v{r}, v{r}", w=V(r), r=V(r)))
        for k in range(4): fma(s9 + k, MC9)
        for k in range(4): ex(s9 + k)
        need = {}
        for g8 in range(4):
            b0 = RS + 8*g8
            for k in range(8): fma(b0 + k, MC)
            if g8 == 0:
                V_(f"v_add_f32 v{B29}, v{s9}, v{s9+1}", V(B29), V(s9, 2))
                V_(f"v_add_f32 v{BM9}, v{s9+2}, v{s9+3}", V(BM9), V(s9+2, 2))
                V_(f"v_cvt_pk_bf16_f32 v{P9}, v{s9}, v{s9+1}", V(P9), V(s9, 2))
                V_(f"v_cvt_pk_bf16_f32 v{P9+1}, v{s9+2}, v{s9+3}", V(P9+1), V(s9+2, 2))
                if j == 0: V_(f"v_add_f32 v{L9}, v{B29}, v{BM9}", V(L9), V(B29) + V(BM9))
                else:
                    V_(f"v_add_f32 v{B29}, v{B29}, v{BM9}", V(B29), V(B29) + V(BM9))
                    V_(f"v_add_f32 v{L9}, v{L9}, v{B29}", V(L9), V(L9) + V(B29))
                need['t'] = len(ops)
            for k in range(8): ex(b0 + k)
            for k in range(4):
                a, b = b0 + 2*k, b0 + 2*k + 1
                if g8 == 0 and k == 0:
                    if j == 0: V_(f"v_mov_b32 v{L_}, v{a}", V(L_), V(a))
                    else: V_(f"v_add_f32 v{L_}, v{L_}, v{a}", V(L_), V(L_) + V(a))
                    V_(f"v_mov_b32 v{LB}, v{b}", V(LB), V(b))
                else:
                    V_(f"v_add_f32 v{L_}, v{L_}, v{a}", V(L_), V(L_) + V(a)); V_(f"v_add_f32 v{LB}, v{LB}, v{b}", V(LB), V(LB) + V(b))
                V_(f"v_cvt_pk_bf16_f32 v{b0+k}, v{a}, v{b}", V(b0+k), V(a) + V(b))
            need[g8] = len(ops)
        V_(f"v_add_f32 v{L_}, v{L_}, v{LB}", V(L_), V(L_) + V(LB))
        return ops, need
    nm = len(mf)
    plan = [[] for _ in range(nm + 1)]
    for j in range(8):
        ops, need = softmax(j)
        ops = [x for x in ops]
        start = marks[('K', j)] + 21
        if j > 0: start = max(start, marks[('V', j-1)] + (21 if j < 7 else 20))
        v0 = marks[('V', j)]
        dl = [(need['t'], v0), (need[0], v0 + 4), (need[1], v0 + 8), (need[2], v0 + 12), (need[3], v0 + 16), (len(ops), v0 + 18)]
        done = 0
        import math as _m
        for sl in range(start, v0 + 19):
            req = 0
            for cnt, dline in dl:
                if dline >= sl and cnt > done:
                    tot = sum(mf[i-1][2] for i in range(sl, dline + 1))
                    req = max(req, int(_m.ceil((cnt - done) * mf[sl-1][2] / tot - 1e-9)))
            plan[sl] += ops[done:done + req]; done += req
        assert done == len(ops)
    synced = [-1]
    DELAY = int(os.environ.get('K1DELAY', '2'))
    def do_read(i):
        n, fn = reads[i]
        if n > synced[0]:
            e.wait(vm=[('kv', n)], lg0=True); e.barrier(); synced[0] = n
            if n >= 1: issue_kv(n + 3)
        fn(R_F + 4*(i % NB), i)
    for i in range(NB): do_read(i)
    nxt = NB; free = 0; hold = 0
    for i in range(nm):
        for op in plan[i]:
            if op != 'gap': op()
        rd, fn, _ = mf[i]
        e.wait(lg=[('r', x) for x in rd])
        fn([R_F + 4*(x % NB) for x in rd])
        free += len(rd)
        while free > 0 and nxt < len(reads):
            if reads[nxt][0] > synced[0] and hold < DELAY:
                hold += 1; break
            hold = 0
            do_read(nxt); nxt += 1; free -= 1
    for op in plan[nm]:
        if op != 'gap': op()
    if 'stamp' in EXP1: e.s('s_memrealtime s[100:101]')
    e.wait(lg0=True); e.barrier()
    if WOPF == "1":
        e.s("s_cmp_ge_u32 s2, 512"); e.s(f"s_cbranch_scc1 {name}_nopf")
        e.s("s_cmp_lt_u32 s2, 256")
        mk_srd(e, sW, 72, 82, 5242880)
        e.s("s_and_b32 s3, s2, 255"); e.s("s_mul_i32 s3, s3, 20480"); e.s(f"s_mul_i32 s4, s{sWV}, 5120"); e.s("s_add_u32 s3, s3, s4", w=S(3))
        e.s("s_add_u32 s4, s3, 4096", w=S(4))
        e.v(f"v_lshlrev_b32 v{T0}, 4, v{vL}", w=V(T0), r=V(vL))
        for k in range(4): e.bload(R_Q + 4*k, 4, T0, sW, 3, 1024*k, 'pf')
        e.bload(R_Q + 16, 4, T0, sW, 4, 0, 'pf')
        e.label(f"{name}_nopf")
        e.nop(2)
    X1, X2, X3, X4 = T0, T0+1, T0+2, T0+3
    e.v(f"v_mov_b32 v{X1}, v{L9}", w=V(X1), r=V(L9))
    e.v(f"v_mov_b32 v{X2}, v{L_}", w=V(X2), r=V(L_))
    e.ins(f"v_permlane32_swap_b32 v{L9}, v{X1}", 'perm', w=V(L9) + V(X1), r=V(L9) + V(X1))
    e.ins(f"v_permlane32_swap_b32 v{L_}, v{X2}", 'perm', w=V(L_) + V(X2), r=V(L_) + V(X2))
    e.v(f"v_add_f32 v{L9}, v{L9}, v{X1}", w=V(L9), r=V(L9) + V(X1))
    e.v(f"v_add_f32 v{L_}, v{L_}, v{X2}", w=V(L_), r=V(L_) + V(X2))
    e.v(f"v_mov_b32 v{X1}, v{L9}", w=V(X1), r=V(L9))
    e.t(f"v_rcp_f32 v{L_}, v{L_}", w=V(L_), r=V(L_))
    e.ins(f"v_permlane16_swap_b32 v{L9}, v{X1}", 'perm', w=V(L9) + V(X1), r=V(L9) + V(X1))
    e.v(f"v_add_f32 v{L9}, v{L9}, v{X1}", w=V(L9), r=V(L9) + V(X1))
    q16, gg = X1, X2
    e.v(f"v_and_b32 v{q16}, 15, v{vL}", w=V(q16), r=V(vL))
    e.v(f"v_lshrrev_b32 v{gg}, 4, v{vL}", w=V(gg), r=V(vL))
    e.s(f"s_mul_i32 s3, s{sWV}, 8448", w=S(3)); e.s(f"s_add_u32 s3, s3, {KVB}", w=S(3)); e.s("s_movk_i32 s4, 528", w=S(4))
    e.v(f"v_mul_lo_u32 v{X3}, v{q16}, s4", w=V(X3), r=V(q16))
    e.v(f"v_lshl_add_u32 v{X4}, v{gg}, 4, v{X3}", w=V(X4), r=V(gg) + V(X3))
    e.v(f"v_add_u32 v{X4}, s3, v{X4}", w=V(X4), r=V(X4))
    for t9 in range(8): e.dsw("ds_write_b128", X4, R_O9 + 4*t9, 4, 64*t9)
    e.s(f"s_lshl_b32 s3, s{sWV}, 7", w=S(3)); e.s(f"s_add_u32 s3, s3, {MLB}", w=S(3))
    e.v(f"v_lshlrev_b32 v{X4}, 3, v{q16}", w=V(X4), r=V(q16))
    e.v(f"v_add_u32 v{(T0+5)}, s3, v{X4}", w=V((T0+5)), r=V(X4))
    e.v(f"v_mov_b32 v{M9}, v{MC9}", w=V(M9), r=V(MC9))
    e.dsw("ds_write_b64", (T0+5), M9, 2, 0)
    e.s(f"s_mul_i32 s3, s{sBR}, 72", w=S(3)); e.s(f"s_lshl_b32 s4, s{sB}, 2", w=S(4)); e.s("s_add_u32 s4, s4, s3", w=S(4))
    e.s(f"s_add_u32 s4, s4, s{sWV}", w=S(4)); e.s("s_lshl_b32 s4, s4, 18", w=S(4))
    e.s(f"s_lshl_b32 s5, s{sH}, 13", w=S(5)); e.s(f"s_add_u32 s{sT0}, s4, s5", w=S(sT0))
    e.s(f"s_add_u32 s{sT1}, s{sT0}, 4096", w=S(sT1))
    e.s(f"s_lshr_b32 s4, s{sB}, 1", w=S(4)); e.s("s_add_u32 s4, s4, s3", w=S(4)); e.s("s_add_u32 s4, s4, 64", w=S(4))
    e.s("s_lshl_b32 s4, s4, 18", w=S(4)); e.s(f"s_add_u32 s{sT2}, s4, s5", w=S(sT2))
    e.v(f"v_lshlrev_b32 v{vT2}, 4, v{vL}", w=V(vT2), r=V(vL))
    for ks in range(8):
        b0 = R_O + 8*ks
        for k in range(8): e.v(f"v_mul_f32 v{b0+k}, v{b0+k}, v{L_}", w=V(b0+k), r=V(b0+k) + V(L_))
        for k in range(4): e.v(f"v_cvt_pk_bf16_f32 v{b0+k}, v{b0+2*k}, v{b0+2*k+1}", w=V(b0+k), r=V(b0+2*k, 2))
        e.bstore(b0, 4, vT2, sO, sT0 if ks < 4 else sT1, 1024*(ks % 4), fl=OSFL)
    e.wait(lg0=True); e.barrier()
    B0 = R_SA
    e.v(f"v_lshlrev_b32 v{X4}, 3, v{q16}", w=V(X4), r=V(q16))
    e.v(f"v_add_u32 v{X4}, {MLB}, v{X4}", w=V(X4), r=V(X4))
    for w_ in range(4): e.dsr("ds_read_b64", B0 + 2*w_, 2, X4, 128*w_, 'ml')
    e.s(f"s_lshl_b32 s3, s{sWV}, 7", w=S(3))
    e.v(f"v_lshl_add_u32 v{X3}, v{gg}, 5, v{X3}", w=V(X3), r=V(gg) + V(X3))
    e.v(f"v_add_u32 v{X3}, s3, v{X3}", w=V(X3), r=V(X3))
    for w_ in range(4):
        for hh in range(2): e.dsr("ds_read_b128", R_F + 8*w_ + 4*hh, 4, X3, KVB + 8448*w_ + 16*hh, 'o9')
    e.wait(lg=['ml'])
    MM, LL = B0 + 8, B0 + 9
    e.v(f"v_max3_f32 v{MM}, v{B0}, v{B0+2}, v{B0+4}", w=V(MM), r=V(B0, 6))
    e.v(f"v_max_f32 v{MM}, v{MM}, v{B0+6}", w=V(MM), r=V(MM) + V(B0+6))
    for w_ in range(4): e.v(f"v_sub_f32 v{B0+2*w_}, v{B0+2*w_}, v{MM}", w=V(B0+2*w_), r=V(B0+2*w_) + V(MM))
    for w_ in range(4): e.t(f"v_exp_f32 v{B0+2*w_}, v{B0+2*w_}", w=V(B0+2*w_), r=V(B0+2*w_))
    e.v(f"v_mul_f32 v{LL}, v{B0}, v{B0+1}", w=V(LL), r=V(B0, 2))
    for w_ in range(1, 4): e.v(f"v_fmac_f32 v{LL}, v{B0+2*w_}, v{B0+2*w_+1}", w=V(LL), r=V(LL) + V(B0+2*w_, 2))
    e.t(f"v_rcp_f32 v{LL}, v{LL}", w=V(LL), r=V(LL))
    for w_ in range(4): e.v(f"v_mul_f32 v{B0+2*w_}, v{B0+2*w_}, v{LL}", w=V(B0+2*w_), r=V(B0+2*w_) + V(LL))
    e.wait(lg0=True)
    for k in range(8):
        e.v(f"v_mul_f32 v{R_F+k}, v{R_F+k}, v{B0}", w=V(R_F+k), r=V(R_F+k) + V(B0))
        for w_ in range(1, 4):
            e.v(f"v_fmac_f32 v{R_F+k}, v{R_F+8*w_+k}, v{B0+2*w_}", w=V(R_F+k), r=V(R_F+k) + V(R_F+8*w_+k) + V(B0+2*w_))
    for k in range(4): e.v(f"v_cvt_pk_bf16_f32 v{R_F+k}, v{R_F+2*k}, v{R_F+2*k+1}", w=V(R_F+k), r=V(R_F+2*k, 2))
    e.s(f"s_and_b32 s3, s{sB}, 1", w=S(3)); e.s("s_lshl_b32 s3, s3, 8", w=S(3))
    e.s(f"s_lshl_b32 s4, s{sWV}, 11", w=S(4)); e.s("s_add_u32 s3, s3, s4", w=S(3))
    e.v(f"v_lshlrev_b32 v{X3}, 9, v{gg}", w=V(X3), r=V(gg))
    e.v(f"v_lshl_add_u32 v{X3}, v{q16}, 4, v{X3}", w=V(X3), r=V(q16) + V(X3))
    e.v(f"v_add_u32 v{X3}, s3, v{X3}", w=V(X3), r=V(X3))
    e.bstore(R_F, 4, X3, sO, sT2, 0, fl=OSFL)
    if 'stamp' in EXP1:
        e.s("s_memtime s[94:95]"); e.s("s_memrealtime s[96:97]"); e.s("s_waitcnt lgkmcnt(0)")
        e.s("s_mov_b32 s88, s86"); e.s("s_mov_b32 s89, s87"); e.s("s_sub_u32 s94, s94, s90")
        e.s("s_mov_b32 s90, 0x8000000"); e.s("s_mov_b32 s91, 0x20000")
        e.s("s_lshl_b32 s3, s2, 4"); e.s("s_add_u32 s3, s3, 0x4000000")
        e.s("s_getreg_b32 s4, hwreg(HW_REG_HW_ID)"); e.s("s_getreg_b32 s5, hwreg(HW_REG_XCC_ID)")
        e.s("s_lshl_b32 s5, s5, 28"); e.s("s_and_b32 s4, s4, 0xfffffff"); e.s("s_or_b32 s4, s4, s5")
        e.v("v_mov_b32 v0, s92", w=V(0)); e.v("v_mov_b32 v1, s96", w=V(1)); e.v("v_mov_b32 v2, s98", w=V(2)); e.v("v_mov_b32 v3, s100", w=V(3)); e.v("v_mov_b32 v4, s3", w=V(4))
        e.nop(4)
        e.raw("    buffer_store_dwordx4 v[0:3], v4, s[88:91], 0 offen")
    e.label(f"{name}_end")
    e.raw("    s_endpgm")
    for j in resc:
        e.label(f"{name}_rs{j}")
        e.nop(16)
        BM, BM9, A1, A9 = T0, T0+2, T0+1, T0+3
        e.v(f"v_max_f32 v{BM}, v{BM}, v{M_}", w=V(BM), r=V(BM) + V(M_))
        e.v(f"v_max_f32 v{BM9}, v{BM9}, v{M9}", w=V(BM9), r=V(BM9) + V(M9))
        e.v(f"v_sub_f32 v{A1}, v{M_}, v{BM}", w=V(A1), r=V(M_) + V(BM))
        e.v(f"v_sub_f32 v{A9}, v{M9}, v{BM9}", w=V(A9), r=V(M9) + V(BM9))
        e.v(f"v_mul_f32 v{A1}, s{sC}, v{A1}", w=V(A1), r=V(A1)); e.v(f"v_mul_f32 v{A9}, s{sC}, v{A9}", w=V(A9), r=V(A9))
        e.t(f"v_exp_f32 v{A1}, v{A1}", w=V(A1), r=V(A1)); e.t(f"v_exp_f32 v{A9}, v{A9}", w=V(A9), r=V(A9))
        e.v(f"v_mov_b32 v{M_}, v{BM}", w=V(M_), r=V(BM)); e.v(f"v_mov_b32 v{M9}, v{BM9}", w=V(M9), r=V(BM9))
        e.v(f"v_mul_f32 v{MC}, s{sC}, v{BM}", w=V(MC), r=V(BM)); e.v(f"v_mul_f32 v{MC9}, s{sC}, v{BM9}", w=V(MC9), r=V(BM9))
        e.v(f"v_mul_f32 v{L_}, v{L_}, v{A1}", w=V(L_), r=V(L_) + V(A1)); e.v(f"v_mul_f32 v{L9}, v{L9}, v{A9}", w=V(L9), r=V(L9) + V(A9))
        for k in range(64): e.v(f"v_mul_f32 v{R_O+k}, v{R_O+k}, v{A1}", w=V(R_O+k), r=V(R_O+k) + V(A1))
        for k in range(32): e.v(f"v_mul_f32 v{R_O9+k}, v{R_O9+k}, v{A9}", w=V(R_O9+k), r=V(R_O9+k) + V(A9))
        e.nop(4)
        e.s(f"s_branch {name}_rb{j}")
    return e.text()
```

```python
from emit import *
from emit import EXP1
import math, struct
def f2u(f): return struct.unpack('<I', struct.pack('<f', f))[0]
CSC = math.log2(math.e) / math.sqrt(128.0)
THR = 8.0 / CSC

SLOT = 16384
KVB = 16384
Q9B = 0
MLB = 4096
LDS1 = 81920
R_O, R_SA, R_SB, R_Q, R_F, R_O9 = 0, 64, 96, 128, 160, 192
R_QA = 160
R_TA = 224
S9A, S9B, P9 = 224, 228, 232
M9, L9, M_, L_, MC, MC9 = 234, 235, 236, 237, 238, 239
T0 = 240
vKA, vVA, vK9, vV9, vDK, vDV, vL, vT2 = 248, 249, 250, 251, 252, 253, 254, 255
vAW, vDW, vX = 96, 104, 106
sK, sV, sW, sO = 12, 16, 20, 24
sWV, sBR, sB, sH, sXO, sWO, sKO, sLW, sC, sTH = 28, 29, 30, 31, 32, 34, 35, 36, 37, 38
sT0, sT1, sT2 = 40, 41, 42
sKX = 44
import os
KVFL = os.environ.get("KVFL", " nt")
WQFL = os.environ.get("WQFL", "")
XFL = os.environ.get("XFL", "")
OSFL = os.environ.get("OSFL", "")
WOPF = os.environ.get("WOPF", "2")
XF = 37748736
WSZ = XF + 6553600
def load_ptrs(e):
    e.s("s_load_dwordx16 s[64:79], s[0:1], 0", w=S(64, 16))
    e.s("s_load_dwordx4 s[80:83], s[0:1], 64", w=S(80, 4))
    e.s("s_load_dwordx2 s[84:85], s[0:1], 80", w=S(84, 2))
    e.s("s_load_dwordx2 s[86:87], s[0:1], 96", w=S(86, 2))

def mk_srd(e, d, a, b, size):
    if b is None:
        e.s(f"s_mov_b32 s{d}, s{a}"); e.s(f"s_and_b32 s{d+1}, s{a+1}, 0xffff")
    else:
        e.s(f"s_cselect_b32 s{d}, s{a}, s{b}"); e.s(f"s_cselect_b32 s{d+1}, s{a+1}, s{b+1}")
    e.s(f"s_mov_b32 s{d+2}, {size}"); e.s(f"s_mov_b32 s{d+3}, 0x00020000")


def gen_k1(name):
    e = Em(); e.abl = True
    e.label(name)
    e.s("s_cmp_ge_u32 s2, 1024"); e.s(f"s_cbranch_scc1 {name}_end")
    load_ptrs(e)
    PR = os.environ.get('K1PRIO', '')
    if PR:
        lo, hi = PR.split('-')
        e.s(f"s_cmp_lt_u32 s2, {lo}"); e.s(f"s_cbranch_scc1 {name}_np")
        e.s(f"s_cmp_ge_u32 s2, {hi}"); e.s(f"s_cbranch_scc1 {name}_np")
        e.s("s_setprio 2")
        e.label(f"{name}_np")
    if 'stamp' in EXP1:
        e.s("s_memtime s[90:91]"); e.s("s_memrealtime s[92:93]"); e.s("s_load_dwordx2 s[88:89], s[0:1], 88")
    def vv(t, w, r=()): e.v(t, w=V(w), r=[x for a in r for x in V(a)])
    vv(f"v_and_b32 v{vL}, 63, v0", vL, [0])
    vv(f"v_lshrrev_b32 v{T0}, 6, v0", T0, [0])
    e.ins(f"v_readfirstlane_b32 s{sWV}, v{T0}", 'rdlane', w=S(sWV), r=V(T0))
    e.s("s_and_b32 s3, s2, 7"); e.s("s_lshr_b32 s4, s2, 3")
    e.s(f"s_lshr_b32 s{sBR}, s3, 2")
    e.s("s_and_b32 s3, s3, 3"); e.s("s_lshl_b32 s3, s3, 3"); e.s("s_and_b32 s5, s4, 7")
    e.s(f"s_add_u32 s{sH}, s3, s5"); e.s(f"s_lshr_b32 s{sB}, s4, 3")
    e.s(f"s_mov_b32 s{sC}, {f2u(CSC)}"); e.s(f"s_mov_b32 s{sTH}, {f2u(THR)}")
    e.s(f"s_lshl_b32 s3, s{sBR}, 4"); e.s(f"s_add_u32 s3, s3, s{sB}"); e.s("s_mul_i32 s3, s3, 204800"); e.s(f"s_add_u32 s{sXO+1}, s3, {XF + 4*40960}")
    e.s(f"s_mul_i32 s4, s{sWV}, 40960", r=S(sWV)); e.s("s_add_u32 s3, s3, s4"); e.s(f"s_add_u32 s{sXO}, s3, {XF}")
    e.s(f"s_lshl_b32 s{sLW}, s{sWV}, 12")
    e.s(f"s_lshl_b32 s3, s{sWV}, 16"); e.s(f"s_lshl_b32 s4, s{sH}, 8"); e.s(f"s_add_u32 s{sWO}, s3, s4")
    e.s(f"s_lshl_b32 s3, s{sB}, 5"); e.s(f"s_add_u32 s3, s3, s{sH}"); e.s("s_lshl_b32 s3, s3, 17")
    e.s(f"s_add_u32 s{sKO}, s3, s{sLW}")
    e.s(f"s_lshl_b32 s39, s{sWV}, 11")
    A, Bq, C_, D_, E_, F_, X1, X2 = [T0 + i for i in range(8)]
    vv(f"v_lshrrev_b32 v{A}, 4, v{vL}", A, [vL])
    vv(f"v_and_b32 v{Bq}, 15, v{vL}", Bq, [vL])
    vv(f"v_xor_b32 v{C_}, v{A}, v{Bq}", C_, [A, Bq])
    vv(f"v_lshlrev_b32 v{C_}, 4, v{C_}", C_, [C_])
    vv(f"v_lshl_add_u32 v{vDK}, v{A}, 8, v{C_}", vDK, [A, C_])
    vv(f"v_lshl_add_u32 v{vK9}, v{Bq}, 8, v{C_}", vK9, [Bq, C_])
    vv(f"v_lshlrev_b32 v{C_}, 2, v{A}", C_, [A])
    vv(f"v_xor_b32 v{C_}, v{C_}, v{Bq}", C_, [C_, Bq])
    vv(f"v_lshlrev_b32 v{C_}, 4, v{C_}", C_, [C_])
    vv(f"v_lshl_add_u32 v{vDV}, v{A}, 8, v{C_}", vDV, [A, C_])
    vv(f"v_lshl_add_u32 v{vDW}, v{A}, 13, v{C_}", vDW, [A, C_])
    vv(f"v_xor_b32 v{vDW+1}, 32, v{vDW}", vDW+1, [vDW])
    vv(f"v_and_b32 v{C_}, 31, v{vL}", C_, [vL])
    vv(f"v_lshrrev_b32 v{D_}, 5, v{vL}", D_, [vL])
    vv(f"v_lshlrev_b32 v{vX}, 4, v{vL}", vX, [vL])
    e.wait(lg0=True)
    e.s(f"s_cmp_eq_u32 s{sBR}, 0")
    mk_srd(e, sK, 66, 76, 67108864); mk_srd(e, sV, 68, 78, 67108864)
    mk_srd(e, sW, 70, 80, 5242880); mk_srd(e, sO, 86, None, WSZ)
    seq = [('K', 0)]
    for j in range(7): seq += [('K', j + 1), ('V', j)]
    seq += [('V', 7)]
    def slot_of(n): return ((n + 3) % 4) * SLOT
    DT = [107, 108]
    def issue_kv(n, us=(0, 1, 2, 3), tmp=None):
        if n > 15: return
        kind, j = seq[n]
        tmp = tmp or DT
        e.s(f"s_add_u32 s{sT0}, s{sKO}, {j*16384}", w=S(sT0))
        e.s(f"s_add_u32 m0, s{sLW}, {KVB + slot_of(n)}", w=[('m0', 0)])
        for u in us:
            x = (64*u) if kind == 'K' else (32*(u & 1))
            base = vDK if kind == 'K' else vDV
            a = base
            if x:
                a = tmp[u & 1]
                vv(f"v_xor_b32 v{a}, {x}, v{base}", a, [base])
            e.dma(a, sK if kind == 'K' else sV, sT0, u*1024, ('kv', n), KVFL)
    def wsub(c): return (16384 + ((c - 12) % 8) * 8192) % 65536
    QD = 6
    XBUF = [0, 12, 24, 36, 48, 116, 128]
    R_TO = 144
    def issue_w(c):
        if c > 19: return
        for u in range(2):
            e.s(f"s_add_u32 s{sT0}, s{sWO}, {c*262144 + u*32768}", w=S(sT0))
            e.s(f"s_add_u32 m0, s39, {wsub(c) + u*1024}", w=[('m0', 0)])
            if 'nowd' not in EXP1: e.dma(vDW + u, sW, sT0, 0, ('w', c), WQFL)
        e.s(f"s_add_u32 s{sT1}, s{sXO}, {c*2048}", w=S(sT1))
        e.s(f"s_add_u32 s{sT2}, s{sXO+1}, {c*1024}", w=S(sT2))
        b0 = XBUF[c % 7]
        for s in range(2): e.bload(b0 + 4*s, 4, vX, sO, sT1, 1024*s, ('w', c), XFL)
        e.bload(b0 + 8, 4, vX, sO, sT2, 0, ('w', c), XFL)
    for c in range(QD): issue_w(c)
    issue_kv(0)
    if os.environ.get('K1TOUCH', '0') == '1':
        e.s(f"s_add_u32 m0, s{sLW}, {KVB + 3*SLOT}", w=[('m0', 0)])
        e.s(f"s_and_b32 s3, s{sH}, 7", w=S(3)); e.s("s_mul_i32 s3, s3, 25600", w=S(3)); e.s(f"s_mul_i32 s4, s{sWV}, 6400", w=S(4))
        e.s("s_add_u32 s3, s3, s4", w=S(3)); e.s(f"s_add_u32 s3, s3, s{sXO+1}", w=S(3)); e.s(f"s_sub_u32 s3, s3, {4*40960}", w=S(3))
        e.s("s_add_u32 s4, s3, 3072", w=S(4))
        for k in range(3): e.dma(vX, sO, 3, 1024*k, 'touch')
        for k in range(4): e.dma(vX, sO, 4, 1024*k, 'touch')
        e.s(f"s_and_b32 s3, s{sB}, 7", w=S(3)); e.s("s_mul_i32 s3, s3, 80", w=S(3)); e.s(f"s_mul_i32 s4, s{sWV}, 20", w=S(4))
        e.s("s_add_u32 s3, s3, s4", w=S(3)); e.s("s_lshl_b32 s3, s3, 13", w=S(3)); e.s(f"s_lshl_b32 s4, s{sH}, 8", w=S(4)); e.s("s_add_u32 s3, s3, s4", w=S(3))
        for k in range(5):
            e.dma(vDW, sW, 3, 0, 'touch')
            if k < 4: e.s("s_add_u32 s3, s3, 32768", w=S(3))
    R4, CC, DH, LOWC, SUB = E_, F_, 110, 111, 112
    vv(f"v_lshrrev_b32 v{R4}, 2, v{Bq}", R4, [Bq])
    vv(f"v_and_b32 v{CC}, 3, v{vL}", CC, [vL])
    vv(f"v_and_b32 v{DH}, 1, v{A}", DH, [A])
    vv(f"v_and_b32 v{LOWC}, 1, v{CC}", LOWC, [CC])
    vv(f"v_lshl_add_u32 v{LOWC}, v{DH}, 1, v{LOWC}", LOWC, [DH, LOWC])
    vv(f"v_lshrrev_b32 v{SUB}, 1, v{CC}", SUB, [CC])
    vv(f"v_lshlrev_b32 v{SUB}, 3, v{SUB}", SUB, [SUB])
    for u in range(4):
        e.s(f"s_add_u32 s3, s{sWV}, {u}", w=S(3)); e.s("s_and_b32 s3, s3, 3", w=S(3))
        e.s(f"s_lshl_b32 s{sKX+2*u}, s3, 6", w=S(sKX+2*u)); e.s(f"s_xor_b32 s{sKX+2*u+1}, s{sKX+2*u}, 32", w=S(sKX+2*u+1))
        vv(f"v_xor_b32 v{X1}, s3, v{R4}", X1, [R4])
        for ee in range(2):
            d = vAW + 2*u + ee
            vv(f"v_xor_b32 v{X2}, {2*ee}, v{LOWC}", X2, [LOWC])
            vv(f"v_lshl_add_u32 v{X2}, v{X1}, 2, v{X2}", X2, [X1, X2])
            vv(f"v_lshl_add_u32 v{X2}, v{X2}, 4, v{SUB}", X2, [X2, SUB])
            vv(f"v_lshl_add_u32 v{X2}, v{R4}, 8, v{X2}", X2, [R4, X2])
            vv(f"v_lshl_add_u32 v{d}, v{D_}, 12, v{X2}", d, [D_, X2])
            if ee: vv(f"v_add_u32 v{d}, 1024, v{d}", d, [d])
    vv(f"v_lshlrev_b32 v{X2}, 1, v{D_}", X2, [D_])
    vv(f"v_xor_b32 v{X2}, v{X2}, v{LOWC}", X2, [X2, LOWC])
    vv(f"v_lshl_add_u32 v{X2}, v{R4}, 2, v{X2}", X2, [R4, X2])
    vv(f"v_lshl_add_u32 v{X2}, v{X2}, 4, v{SUB}", X2, [X2, SUB])
    vv(f"v_lshl_add_u32 v{X2}, v{R4}, 8, v{X2}", X2, [R4, X2])
    vv(f"v_lshl_add_u32 v{X2}, v{D_}, 10, v{X2}", X2, [D_, X2])
    vv(f"v_add_u32 v{vVA}, {KVB}, v{X2}", vVA, [X2])
    vv(f"v_lshrrev_b32 v{X1}, 1, v{CC}", X1, [CC])
    vv(f"v_lshl_or_b32 v{X1}, v{R4}, 2, v{X1}", X1, [R4, X1])
    vv(f"v_lshlrev_b32 v{X2}, 1, v{DH}", X2, [DH])
    vv(f"v_xor_b32 v{X1}, v{X1}, v{X2}", X1, [X1, X2])
    vv(f"v_and_b32 v{X2}, 1, v{CC}", X2, [CC])
    vv(f"v_lshlrev_b32 v{X2}, 3, v{X2}", X2, [X2])
    vv(f"v_lshl_add_u32 v{X1}, v{X1}, 4, v{X2}", X1, [X1, X2])
    vv(f"v_lshl_add_u32 v{X1}, v{R4}, 8, v{X1}", X1, [R4, X1])
    vv(f"v_lshl_add_u32 v{X1}, v{A}, 10, v{X1}", X1, [A, X1])
    e.s(f"s_add_u32 s43, s{sLW}, {KVB}", w=S(43))
    vv(f"v_add_u32 v{vV9}, s43, v{X1}", vV9, [X1])
    e.s(f"s_lshl_b32 s3, s{sWV}, 2", w=S(3))
    vv(f"v_add_u32 v{X1}, s3, v{D_}", X1, [D_])
    vv(f"v_xor_b32 v{X1}, v{X1}, v{Bq}", X1, [X1, Bq])
    vv(f"v_lshlrev_b32 v{X1}, 4, v{X1}", X1, [X1])
    vv(f"v_lshl_add_u32 v{vT2}, v{Bq}, 8, v{X1}", vT2, [Bq, X1])
    vv(f"v_xor_b32 v{X1}, v{D_}, v{Bq}", X1, [D_, Bq])
    vv(f"v_lshlrev_b32 v{X1}, 4, v{X1}", X1, [X1])
    vv(f"v_lshl_add_u32 v{X1}, v{C_}, 8, v{X1}", X1, [C_, X1])
    vv(f"v_add_u32 v{vKA}, {KVB}, v{X1}", vKA, [X1])
    AFB = 64
    def qsync(c):
        if c > 19: return
        e.wait(vm=[('w', c)])
        e.barrier()
    def qrd(k):
        if k >= 40: return
        c, s = divmod(k, 2)
        for u in range(4):
            for ee in range(2):
                e.dsr("ds_read_b64_tr_b16", AFB + 16*(k % 2) + 4*u + 2*ee, 2, vAW + 2*u + ee, wsub(c) + 2048*s, ('a', k, u))
    QP = os.environ.get('K1QPRIO', '3')
    if QP != '0': e.s(f's_setprio {QP}')
    qsync(0); qrd(0); qrd(1)
    for k in range(40):
        c, s = divmod(k, 2)
        xb = XBUF[c % 7]
        for u in range(4):
            e.wait(lg=[('a', k, u)])
            a = AFB + 16*(k % 2) + 4*u
            e.mfma32(R_QA + 16*u, a, xb + 4*s, None if k == 0 else R_QA + 16*u)
            if u == 0:
                ta = R_TA if s == 0 else R_TO
                e.mfma32(ta, a, xb + 8, None if k < 2 else ta)
            if u == 1 and s == 0:
                qsync(c + 1)
                if c + 1 > 19: e.barrier()
                issue_w(c + QD)
                if c in (14, 16, 18): issue_kv((c - 12) // 2)
        qrd(k + 2)
    if 'stamp' in EXP1: e.s('s_memrealtime s[98:99]'); e.wait(lg0=True)
    TT = 64
    if QP != '0': e.s('s_setprio 0')
    for k in range(16): e.v(f"v_mov_b32 v{TT+k}, v{R_TA+k}", w=V(TT+k), r=V(R_TA+k))
    for k in range(16): e.ins(f"v_permlane16_swap_b32 v{R_TO+k}, v{TT+k}", 'perm', w=V(R_TO+k) + V(TT+k), r=V(R_TO+k) + V(TT+k))
    for k in range(16): e.v(f"v_add_f32 v{R_TA+k}, v{R_TA+k}, v{TT+k}", w=V(R_TA+k), r=V(R_TA+k) + V(TT+k))
    for k in range(8):
        e.v(f"v_cvt_pk_bf16_f32 v{R_SB+k}, v{R_TA+2*k}, v{R_TA+2*k+1}", w=V(R_SB+k), r=V(R_TA+2*k, 2))
    e.v(f"v_xor_b32 v{T0}, 32, v{vT2}", w=V(T0), r=V(vT2))
    e.wait(lg0=True); e.barrier()
    e.s("s_mov_b32 exec_lo, 0xffff"); e.s("s_mov_b32 exec_hi, 0xffff"); e.nop(1)
    e.dsw("ds_write_b128", vT2, R_SB, 4, Q9B); e.dsw("ds_write_b128", T0, R_SB + 4, 4, Q9B)
    e.s("s_mov_b64 exec, -1"); e.nop(1)
    for k in range(32):
        e.v(f"v_cvt_pk_bf16_f32 v{R_Q+k}, v{R_QA+2*k}, v{R_QA+2*k+1}", w=V(R_Q+k), r=V(R_QA+2*k, 2))
    NB = 8
    AT = [T0+6, T0+7]
    DT[:] = [T0+4, T0+5]
    reads = []
    mf = []
    atog = [0]
    def addr(base, x, sg=None):
        if sg is None and x == 0: return base
        a = AT[atog[0]]; atog[0] ^= 1
        if sg is not None: vv(f"v_xor_b32 v{a}, s{sg}, v{base}", a, [base])
        else: vv(f"v_xor_b32 v{a}, {x}, v{base}", a, [base])
        return a
    def add_K(n, j):
        sb = slot_of(n); RS = R_SA if j % 2 == 0 else R_SB; s9 = S9A if j % 2 == 0 else S9B
        for s in range(4):
            st = {}
            def rq(d, i, s=s, st=st):
                st['a'] = addr(vK9, 64*s); e.dsr("ds_read_b128", d, 4, st['a'], Q9B, ('r', i))
            def rk(d, i, s=s, st=st):
                a = AT[atog[0]]; atog[0] ^= 1
                vv(f"v_add_u32 v{a}, s43, v{st['a']}", a, [st['a']]); e.dsr("ds_read_b128", d, 4, a, sb, ('r', i))
            reads.append((n, rq)); reads.append((n, rk))
            mf.append(([len(reads)-2, len(reads)-1], lambda r, s=s: e.mfma16(s9, r[1], r[0], None if s == 0 else s9), 0.5))
        for s in range(8):
            st = {}
            def r0(d, i, s=s, st=st):
                st['a'] = addr(vKA, 0, sKX + s); e.dsr("ds_read_b128", d, 4, st['a'], sb, ('r', i))
            def r1(d, i, s=s, st=st): e.dsr("ds_read_b128", d, 4, st['a'], sb + 8192, ('r', i))
            for kt, rf in enumerate((r0, r1)):
                reads.append((n, rf))
                mf.append(([len(reads)-1], lambda r, s=s, kt=kt: e.mfma32(RS + 16*kt, r[0], R_Q + 4*s, None if s == 0 else RS + 16*kt), 1))
    def add_V(n, j):
        sb = slot_of(n); RS = R_SA if j % 2 == 0 else R_SB
        for t in range(0, 8, 2):
            def r9(d, i, t=t):
                for ee in range(2):
                    a = addr(vV9, 32*(t+ee)); e.dsr("ds_read_b64_tr_b16", d + 2*ee, 2, a, sb, ('r', i))
            reads.append((n, r9))
            def m9(r, t=t):
                for ee in range(2): e.mfma16k16(R_O9 + 4*(t+ee), r[0] + 2*ee, P9, None if j == 0 else R_O9 + 4*(t+ee))
            mf.append(([len(reads)-1], m9, 1))
        for s in range(4):
            for t in range(4):
                def rv(d, i, s=s, t=t):
                    a = addr(vVA, 64*t)
                    for ee in range(2): e.dsr("ds_read_b64_tr_b16", d + 2*ee, 2, a, sb + 4096*s + 2048*ee, ('r', i))
                reads.append((n, rv))
                mf.append(([len(reads)-1], lambda r, s=s, t=t: e.mfma32(R_O + 16*t, r[0], RS + 8*s, None if (j == 0 and s == 0) else R_O + 16*t), 1))
    marks = {}
    for n, (kind, j) in enumerate(seq):
        marks[(kind, j)] = len(mf)
        (add_K if kind == 'K' else add_V)(n, j)
    resc = []
    def softmax(j):
        RS = R_SA if j % 2 == 0 else R_SB; s9 = S9A if j % 2 == 0 else S9B
        BM, B2, BM9, B29 = T0, T0+1, T0+2, T0+3
        ops = []
        def o(f): ops.append(f)
        def V_(txt, w, r): o(lambda: e.v(txt, w=w, r=r))
        def P_(txt, a, b): o(lambda: e.ins(txt, 'perm', w=V(a) + V(b), r=V(a) + V(b)))
        V_(f"v_max3_f32 v{BM9}, v{s9}, v{s9+1}, v{s9+2}", V(BM9), V(s9, 3))
        V_(f"v_max_f32 v{BM9}, v{BM9}, v{s9+3}", V(BM9), V(BM9) + V(s9+3))
        V_(f"v_mov_b32 v{B29}, v{BM9}", V(B29), V(BM9))
        V_(f"v_max3_f32 v{BM}, v{RS}, v{RS+1}, v{RS+2}", V(BM), V(RS, 3))
        V_(f"v_max3_f32 v{B2}, v{RS+3}, v{RS+4}, v{RS+5}", V(B2), V(RS+3, 3))
        P_(f"v_permlane32_swap_b32 v{BM9}, v{B29}", BM9, B29)
        k = 6; tog = 0
        while k < 32:
            d = BM if tog == 0 else B2
            V_(f"v_max3_f32 v{d}, v{d}, v{RS+k}, v{RS+k+1}", V(d), V(d) + V(RS+k, 2)); k += 2; tog ^= 1
            if k == 8:
                V_(f"v_max_f32 v{BM9}, v{BM9}, v{B29}", V(BM9), V(BM9) + V(B29))
                V_(f"v_mov_b32 v{B29}, v{BM9}", V(B29), V(BM9))
            if k == 14: P_(f"v_permlane16_swap_b32 v{BM9}, v{B29}", BM9, B29)
            if k == 16: V_(f"v_max_f32 v{BM9}, v{BM9}, v{B29}", V(BM9), V(BM9) + V(B29))
            if k == 18 and j > 0: V_(f"v_sub_f32 v{B29}, v{BM9}, v{M9}", V(B29), V(BM9) + V(M9))
        V_(f"v_max_f32 v{BM}, v{BM}, v{B2}", V(BM), V(BM) + V(B2))
        V_(f"v_mov_b32 v{B2}, v{BM}", V(B2), V(BM))
        ops.append('gap')
        P_(f"v_permlane32_swap_b32 v{BM}, v{B2}", BM, B2)
        V_(f"v_max_f32 v{BM}, v{BM}, v{B2}", V(BM), V(BM) + V(B2))
        if j == 0:
            V_(f"v_mov_b32 v{M_}, v{BM}", V(M_), V(BM)); V_(f"v_mov_b32 v{M9}, v{BM9}", V(M9), V(BM9))
            V_(f"v_mul_f32 v{MC}, s{sC}, v{BM}", V(MC), V(BM)); V_(f"v_mul_f32 v{MC9}, s{sC}, v{BM9}", V(MC9), V(BM9))
        else:
            V_(f"v_sub_f32 v{B2}, v{BM}, v{M_}", V(B2), V(BM) + V(M_))
            V_(f"v_max_f32 v{B2}, v{B2}, v{B29}", V(B2), V(B2) + V(B29))
            V_(f"v_cmp_lt_f32 vcc, s{sTH}, v{B2}", [('vcc', 0)], V(B2))
            ops.append('gap')
            def br():
                e.nop(2); e.s(f"s_cbranch_vccnz {name}_rs{j}"); e.label(f"{name}_rb{j}"); resc.append(j)
            o(br)
        LA, LB = T0, T0+1
        def fma(r, mc): V_(f"v_fma_f32 v{r}, v{r}, s{sC}, -v{mc}", V(r), V(r) + V(mc))
        def ex(r): o(lambda: e.t(f"v_exp_f32 v{r}, v{r}", w=V(r), r=V(r)))
        for k in range(4): fma(s9 + k, MC9)
        for k in range(4): ex(s9 + k)
        need = {}
        for g8 in range(4):
            b0 = RS + 8*g8
            for k in range(8): fma(b0 + k, MC)
            if g8 == 0:
                V_(f"v_add_f32 v{B29}, v{s9}, v{s9+1}", V(B29), V(s9, 2))
                V_(f"v_add_f32 v{BM9}, v{s9+2}, v{s9+3}", V(BM9), V(s9+2, 2))
                V_(f"v_cvt_pk_bf16_f32 v{P9}, v{s9}, v{s9+1}", V(P9), V(s9, 2))
                V_(f"v_cvt_pk_bf16_f32 v{P9+1}, v{s9+2}, v{s9+3}", V(P9+1), V(s9+2, 2))
                if j == 0: V_(f"v_add_f32 v{L9}, v{B29}, v{BM9}", V(L9), V(B29) + V(BM9))
                else:
                    V_(f"v_add_f32 v{B29}, v{B29}, v{BM9}", V(B29), V(B29) + V(BM9))
                    V_(f"v_add_f32 v{L9}, v{L9}, v{B29}", V(L9), V(L9) + V(B29))
                need['t'] = len(ops)
            for k in range(8): ex(b0 + k)
            for k in range(4):
                a, b = b0 + 2*k, b0 + 2*k + 1
                if g8 == 0 and k == 0:
                    if j == 0: V_(f"v_mov_b32 v{L_}, v{a}", V(L_), V(a))
                    else: V_(f"v_add_f32 v{L_}, v{L_}, v{a}", V(L_), V(L_) + V(a))
                    V_(f"v_mov_b32 v{LB}, v{b}", V(LB), V(b))
                else:
                    V_(f"v_add_f32 v{L_}, v{L_}, v{a}", V(L_), V(L_) + V(a)); V_(f"v_add_f32 v{LB}, v{LB}, v{b}", V(LB), V(LB) + V(b))
                V_(f"v_cvt_pk_bf16_f32 v{b0+k}, v{a}, v{b}", V(b0+k), V(a) + V(b))
            need[g8] = len(ops)
        V_(f"v_add_f32 v{L_}, v{L_}, v{LB}", V(L_), V(L_) + V(LB))
        return ops, need
    nm = len(mf)
    plan = [[] for _ in range(nm + 1)]
    for j in range(8):
        ops, need = softmax(j)
        ops = [x for x in ops]
        start = marks[('K', j)] + 21
        if j > 0: start = max(start, marks[('V', j-1)] + (21 if j < 7 else 20))
        v0 = marks[('V', j)]
        dl = [(need['t'], v0), (need[0], v0 + 4), (need[1], v0 + 8), (need[2], v0 + 12), (need[3], v0 + 16), (len(ops), v0 + 18)]
        done = 0
        import math as _m
        for sl in range(start, v0 + 19):
            req = 0
            for cnt, dline in dl:
                if dline >= sl and cnt > done:
                    tot = sum(mf[i-1][2] for i in range(sl, dline + 1))
                    req = max(req, int(_m.ceil((cnt - done) * mf[sl-1][2] / tot - 1e-9)))
            plan[sl] += ops[done:done + req]; done += req
        assert done == len(ops)
    synced = [-1]
    DELAY = int(os.environ.get('K1DELAY', '2'))
    def do_read(i):
        n, fn = reads[i]
        if n > synced[0]:
            e.wait(vm=[('kv', n)], lg0=True); e.barrier(); synced[0] = n
            if n >= 1: issue_kv(n + 3)
            if n == 4 and WOPF == "2":
                e.s("s_cmp_lt_u32 s2, 512")
                mk_srd(e, sW, 72, 82, 5242880)
                e.s("s_and_b32 s3, s2, 511"); e.s("s_mul_i32 s3, s3, 10240"); e.s(f"s_mul_i32 s4, s{sWV}, 2560"); e.s("s_add_u32 s3, s3, s4", w=S(3))
                e.s("s_mov_b32 m0, 8192", w=[('m0', 0)])
                vv(f"v_lshlrev_b32 v{DT[0]}, 4, v{vL}", DT[0], [vL])
                for k in range(3): e.dma(DT[0], sW, 3, 1024*k, 'pf')
        fn(R_F + 4*(i % NB), i)
    for i in range(NB): do_read(i)
    nxt = NB; free = 0; hold = 0
    for i in range(nm):
        for op in plan[i]:
            if op != 'gap': op()
        rd, fn, _ = mf[i]
        e.wait(lg=[('r', x) for x in rd])
        fn([R_F + 4*(x % NB) for x in rd])
        free += len(rd)
        while free > 0 and nxt < len(reads):
            if reads[nxt][0] > synced[0] and hold < DELAY:
                hold += 1; break
            hold = 0
            do_read(nxt); nxt += 1; free -= 1
    for op in plan[nm]:
        if op != 'gap': op()
    if 'stamp' in EXP1: e.s('s_memrealtime s[100:101]')
    e.wait(lg0=True); e.barrier()
    if WOPF == "1":
        e.s("s_cmp_ge_u32 s2, 512"); e.s(f"s_cbranch_scc1 {name}_nopf")
        e.s("s_cmp_lt_u32 s2, 256")
        mk_srd(e, sW, 72, 82, 5242880)
        e.s("s_and_b32 s3, s2, 255"); e.s("s_mul_i32 s3, s3, 20480"); e.s(f"s_mul_i32 s4, s{sWV}, 5120"); e.s("s_add_u32 s3, s3, s4", w=S(3))
        e.s("s_add_u32 s4, s3, 4096", w=S(4))
        e.v(f"v_lshlrev_b32 v{T0}, 4, v{vL}", w=V(T0), r=V(vL))
        for k in range(4): e.bload(R_Q + 4*k, 4, T0, sW, 3, 1024*k, 'pf')
        e.bload(R_Q + 16, 4, T0, sW, 4, 0, 'pf')
        e.label(f"{name}_nopf")
        e.nop(2)
    X1, X2, X3, X4 = T0, T0+1, T0+2, T0+3
    e.v(f"v_mov_b32 v{X1}, v{L9}", w=V(X1), r=V(L9))
    e.v(f"v_mov_b32 v{X2}, v{L_}", w=V(X2), r=V(L_))
    e.ins(f"v_permlane32_swap_b32 v{L9}, v{X1}", 'perm', w=V(L9) + V(X1), r=V(L9) + V(X1))
    e.ins(f"v_permlane32_swap_b32 v{L_}, v{X2}", 'perm', w=V(L_) + V(X2), r=V(L_) + V(X2))
    e.v(f"v_add_f32 v{L9}, v{L9}, v{X1}", w=V(L9), r=V(L9) + V(X1))
    e.v(f"v_add_f32 v{L_}, v{L_}, v{X2}", w=V(L_), r=V(L_) + V(X2))
    e.v(f"v_mov_b32 v{X1}, v{L9}", w=V(X1), r=V(L9))
    e.t(f"v_rcp_f32 v{L_}, v{L_}", w=V(L_), r=V(L_))
    e.ins(f"v_permlane16_swap_b32 v{L9}, v{X1}", 'perm', w=V(L9) + V(X1), r=V(L9) + V(X1))
    e.v(f"v_add_f32 v{L9}, v{L9}, v{X1}", w=V(L9), r=V(L9) + V(X1))
    q16, gg = X1, X2
    e.v(f"v_and_b32 v{q16}, 15, v{vL}", w=V(q16), r=V(vL))
    e.v(f"v_lshrrev_b32 v{gg}, 4, v{vL}", w=V(gg), r=V(vL))
    e.s(f"s_mul_i32 s3, s{sWV}, 8448", w=S(3)); e.s(f"s_add_u32 s3, s3, {KVB}", w=S(3)); e.s("s_movk_i32 s4, 528", w=S(4))
    e.v(f"v_mul_lo_u32 v{X3}, v{q16}, s4", w=V(X3), r=V(q16))
    e.v(f"v_lshl_add_u32 v{X4}, v{gg}, 4, v{X3}", w=V(X4), r=V(gg) + V(X3))
    e.v(f"v_add_u32 v{X4}, s3, v{X4}", w=V(X4), r=V(X4))
    for t9 in range(8): e.dsw("ds_write_b128", X4, R_O9 + 4*t9, 4, 64*t9)
    e.s(f"s_lshl_b32 s3, s{sWV}, 7", w=S(3)); e.s(f"s_add_u32 s3, s3, {MLB}", w=S(3))
    e.v(f"v_lshlrev_b32 v{X4}, 3, v{q16}", w=V(X4), r=V(q16))
    e.v(f"v_add_u32 v{(T0+5)}, s3, v{X4}", w=V((T0+5)), r=V(X4))
    e.v(f"v_mov_b32 v{M9}, v{MC9}", w=V(M9), r=V(MC9))
    e.dsw("ds_write_b64", (T0+5), M9, 2, 0)
    e.s(f"s_mul_i32 s3, s{sBR}, 72", w=S(3)); e.s(f"s_lshl_b32 s4, s{sB}, 2", w=S(4)); e.s("s_add_u32 s4, s4, s3", w=S(4))
    e.s(f"s_add_u32 s4, s4, s{sWV}", w=S(4)); e.s("s_lshl_b32 s4, s4, 18", w=S(4))
    e.s(f"s_lshl_b32 s5, s{sH}, 13", w=S(5)); e.s(f"s_add_u32 s{sT0}, s4, s5", w=S(sT0))
    e.s(f"s_add_u32 s{sT1}, s{sT0}, 4096", w=S(sT1))
    e.s(f"s_lshr_b32 s4, s{sB}, 1", w=S(4)); e.s("s_add_u32 s4, s4, s3", w=S(4)); e.s("s_add_u32 s4, s4, 64", w=S(4))
    e.s("s_lshl_b32 s4, s4, 18", w=S(4)); e.s(f"s_add_u32 s{sT2}, s4, s5", w=S(sT2))
    e.v(f"v_lshlrev_b32 v{vT2}, 4, v{vL}", w=V(vT2), r=V(vL))
    for ks in range(8):
        b0 = R_O + 8*ks
        for k in range(8): e.v(f"v_mul_f32 v{b0+k}, v{b0+k}, v{L_}", w=V(b0+k), r=V(b0+k) + V(L_))
        for k in range(4): e.v(f"v_cvt_pk_bf16_f32 v{b0+k}, v{b0+2*k}, v{b0+2*k+1}", w=V(b0+k), r=V(b0+2*k, 2))
        e.bstore(b0, 4, vT2, sO, sT0 if ks < 4 else sT1, 1024*(ks % 4), fl=OSFL)
    e.wait(lg0=True); e.barrier()
    B0 = R_SA
    e.v(f"v_lshlrev_b32 v{X4}, 3, v{q16}", w=V(X4), r=V(q16))
    e.v(f"v_add_u32 v{X4}, {MLB}, v{X4}", w=V(X4), r=V(X4))
    for w_ in range(4): e.dsr("ds_read_b64", B0 + 2*w_, 2, X4, 128*w_, 'ml')
    e.s(f"s_lshl_b32 s3, s{sWV}, 7", w=S(3))
    e.v(f"v_lshl_add_u32 v{X3}, v{gg}, 5, v{X3}", w=V(X3), r=V(gg) + V(X3))
    e.v(f"v_add_u32 v{X3}, s3, v{X3}", w=V(X3), r=V(X3))
    for w_ in range(4):
        for hh in range(2): e.dsr("ds_read_b128", R_F + 8*w_ + 4*hh, 4, X3, KVB + 8448*w_ + 16*hh, 'o9')
    e.wait(lg=['ml'])
    MM, LL = B0 + 8, B0 + 9
    e.v(f"v_max3_f32 v{MM}, v{B0}, v{B0+2}, v{B0+4}", w=V(MM), r=V(B0, 6))
    e.v(f"v_max_f32 v{MM}, v{MM}, v{B0+6}", w=V(MM), r=V(MM) + V(B0+6))
    for w_ in range(4): e.v(f"v_sub_f32 v{B0+2*w_}, v{B0+2*w_}, v{MM}", w=V(B0+2*w_), r=V(B0+2*w_) + V(MM))
    for w_ in range(4): e.t(f"v_exp_f32 v{B0+2*w_}, v{B0+2*w_}", w=V(B0+2*w_), r=V(B0+2*w_))
    e.v(f"v_mul_f32 v{LL}, v{B0}, v{B0+1}", w=V(LL), r=V(B0, 2))
    for w_ in range(1, 4): e.v(f"v_fmac_f32 v{LL}, v{B0+2*w_}, v{B0+2*w_+1}", w=V(LL), r=V(LL) + V(B0+2*w_, 2))
    e.t(f"v_rcp_f32 v{LL}, v{LL}", w=V(LL), r=V(LL))
    for w_ in range(4): e.v(f"v_mul_f32 v{B0+2*w_}, v{B0+2*w_}, v{LL}", w=V(B0+2*w_), r=V(B0+2*w_) + V(LL))
    e.wait(lg0=True)
    for k in range(8):
        e.v(f"v_mul_f32 v{R_F+k}, v{R_F+k}, v{B0}", w=V(R_F+k), r=V(R_F+k) + V(B0))
        for w_ in range(1, 4):
            e.v(f"v_fmac_f32 v{R_F+k}, v{R_F+8*w_+k}, v{B0+2*w_}", w=V(R_F+k), r=V(R_F+k) + V(R_F+8*w_+k) + V(B0+2*w_))
    for k in range(4): e.v(f"v_cvt_pk_bf16_f32 v{R_F+k}, v{R_F+2*k}, v{R_F+2*k+1}", w=V(R_F+k), r=V(R_F+2*k, 2))
    e.s(f"s_and_b32 s3, s{sB}, 1", w=S(3)); e.s("s_lshl_b32 s3, s3, 8", w=S(3))
    e.s(f"s_lshl_b32 s4, s{sWV}, 11", w=S(4)); e.s("s_add_u32 s3, s3, s4", w=S(3))
    e.v(f"v_lshlrev_b32 v{X3}, 9, v{gg}", w=V(X3), r=V(gg))
    e.v(f"v_lshl_add_u32 v{X3}, v{q16}, 4, v{X3}", w=V(X3), r=V(q16) + V(X3))
    e.v(f"v_add_u32 v{X3}, s3, v{X3}", w=V(X3), r=V(X3))
    e.bstore(R_F, 4, X3, sO, sT2, 0, fl=OSFL)
    if 'stamp' in EXP1:
        e.s("s_memtime s[94:95]"); e.s("s_memrealtime s[96:97]"); e.s("s_waitcnt lgkmcnt(0)")
        e.s("s_mov_b32 s88, s86"); e.s("s_mov_b32 s89, s87"); e.s("s_sub_u32 s94, s94, s90")
        e.s("s_mov_b32 s90, 0x8000000"); e.s("s_mov_b32 s91, 0x20000")
        e.s("s_lshl_b32 s3, s2, 4"); e.s("s_add_u32 s3, s3, 0x4000000")
        e.s("s_getreg_b32 s4, hwreg(HW_REG_HW_ID)"); e.s("s_getreg_b32 s5, hwreg(HW_REG_XCC_ID)")
        e.s("s_lshl_b32 s5, s5, 28"); e.s("s_and_b32 s4, s4, 0xfffffff"); e.s("s_or_b32 s4, s4, s5")
        e.v("v_mov_b32 v0, s92", w=V(0)); e.v("v_mov_b32 v1, s96", w=V(1)); e.v("v_mov_b32 v2, s98", w=V(2)); e.v("v_mov_b32 v3, s100", w=V(3)); e.v("v_mov_b32 v4, s3", w=V(4))
        e.nop(4)
        e.raw("    buffer_store_dwordx4 v[0:3], v4, s[88:91], 0 offen")
    e.label(f"{name}_end")
    e.raw("    s_endpgm")
    for j in resc:
        e.label(f"{name}_rs{j}")
        e.nop(16)
        BM, BM9, A1, A9 = T0, T0+2, T0+1, T0+3
        e.v(f"v_max_f32 v{BM}, v{BM}, v{M_}", w=V(BM), r=V(BM) + V(M_))
        e.v(f"v_max_f32 v{BM9}, v{BM9}, v{M9}", w=V(BM9), r=V(BM9) + V(M9))
        e.v(f"v_sub_f32 v{A1}, v{M_}, v{BM}", w=V(A1), r=V(M_) + V(BM))
        e.v(f"v_sub_f32 v{A9}, v{M9}, v{BM9}", w=V(A9), r=V(M9) + V(BM9))
        e.v(f"v_mul_f32 v{A1}, s{sC}, v{A1}", w=V(A1), r=V(A1)); e.v(f"v_mul_f32 v{A9}, s{sC}, v{A9}", w=V(A9), r=V(A9))
        e.t(f"v_exp_f32 v{A1}, v{A1}", w=V(A1), r=V(A1)); e.t(f"v_exp_f32 v{A9}, v{A9}", w=V(A9), r=V(A9))
        e.v(f"v_mov_b32 v{M_}, v{BM}", w=V(M_), r=V(BM)); e.v(f"v_mov_b32 v{M9}, v{BM9}", w=V(M9), r=V(BM9))
        e.v(f"v_mul_f32 v{MC}, s{sC}, v{BM}", w=V(MC), r=V(BM)); e.v(f"v_mul_f32 v{MC9}, s{sC}, v{BM9}", w=V(MC9), r=V(BM9))
        e.v(f"v_mul_f32 v{L_}, v{L_}, v{A1}", w=V(L_), r=V(L_) + V(A1)); e.v(f"v_mul_f32 v{L9}, v{L9}, v{A9}", w=V(L9), r=V(L9) + V(A9))
        for k in range(64): e.v(f"v_mul_f32 v{R_O+k}, v{R_O+k}, v{A1}", w=V(R_O+k), r=V(R_O+k) + V(A1))
        for k in range(32): e.v(f"v_mul_f32 v{R_O9+k}, v{R_O9+k}, v{A9}", w=V(R_O9+k), r=V(R_O9+k) + V(A9))
        e.nop(4)
        e.s(f"s_branch {name}_rb{j}")
    return e.text()
```

```python
from emit import *
import os
from k1 import load_ptrs, mk_srd, XF, WSZ
def gen_k0(name):
    e = Em()
    e.label(name)
    e.s("s_cmp_ge_u32 s2, 400"); e.s(f"s_cbranch_scc1 {name}_end")
    load_ptrs(e)
    def vv(t, w, r=()): e.v(t, w=V(w), r=[x for a in r for x in V(a)])
    vv("v_and_b32 v1, 63, v0", 1, [0]); vv("v_lshrrev_b32 v2, 6, v0", 2, [0])
    e.ins("v_readfirstlane_b32 s28, v2", 'rdlane', w=S(28), r=V(2))
    e.s("s_lshl_b32 s3, s2, 2"); e.s("s_add_u32 s3, s3, s28", r=S(28))
    e.s("s_mul_i32 s4, s3, 6554"); e.s("s_lshr_b32 s4, s4, 16")
    e.s("s_mul_i32 s5, s4, 10"); e.s("s_sub_u32 s5, s3, s5")
    e.s("s_mul_i32 s6, s4, 13108"); e.s("s_lshr_b32 s6, s6, 16")
    e.s("s_mul_i32 s7, s6, 5"); e.s("s_sub_u32 s7, s4, s7")
    e.s("s_lshr_b32 s29, s6, 4"); e.s("s_and_b32 s6, s6, 15")
    e.s("s_mul_i32 s30, s6, 184320"); e.s("s_lshl_b32 s31, s5, 7"); e.s("s_add_u32 s30, s30, s31")
    e.s("s_mul_i32 s31, s7, 40960"); e.s("s_add_u32 s30, s30, s31")
    e.s("s_lshl_b32 s31, s3, 12"); e.s(f"s_add_u32 s31, s31, {XF}")
    e.s("s_mul_i32 s34, s4, 40960"); e.s(f"s_add_u32 s34, s34, {XF}"); e.s("s_lshl_b32 s35, s5, 11"); e.s("s_add_u32 s34, s34, s35")
    e.s("s_add_u32 s35, s34, 19456"); e.s("s_sub_u32 s36, s34, 1024"); e.s("s_add_u32 s37, s34, 18432")
    e.s("s_cmp_eq_u32 s7, 4"); e.s("s_cselect_b32 s32, 15, 31", w=S(32)); e.s("s_cselect_b32 s38, 16, 0", w=S(38)); e.s("s_movk_i32 s33, 1280", w=S(33))
    for k in range(4): e.s(f"s_cselect_b32 s{34+k}, s{34+k}, s31", w=S(34+k))
    vv("v_and_b32 v2, s32, v1", 2, [1]); vv("v_mul_lo_u32 v2, v2, s33", 2, [2])
    vv("v_lshrrev_b32 v3, 5, v1", 3, [1]); vv("v_lshl_add_u32 v2, v3, 5, v2", 2, [3, 2])
    vv("v_and_b32 v3, s38, v1", 3, [1]); vv("v_add_u32 v2, v2, v3", 2, [2, 3])
    vv("v_lshlrev_b32 v3, 4, v1", 3, [1])
    e.wait(lg0=True)
    e.s("s_cmp_eq_u32 s29, 0")
    mk_srd(e, 8, 64, 74, 2949120)
    TQ = os.environ.get('K0TQ', '')
    if TQ: mk_srd(e, 16, 70, 80, 5242880)
    mk_srd(e, 12, 86, None, WSZ)
    for s in range(4): e.bload(4 + 4*s, 4, 2, 8, 30, 64*(s//2) + 16*(s%2), ('x', s))
    if TQ:
        e.s("s_mul_i32 s39, s29, 800", w=S(39)); e.s("s_sub_u32 s39, s3, s39", w=S(39)); e.s("s_min_u32 s39, s39, 639", w=S(39)); e.s("s_lshl_b32 s39, s39, 13", w=S(39))
        vv("v_lshlrev_b32 v20, 7, v1", 20, [1])
        e.bload(21, 1, 20, 16, 39, 0, 'tq', TQ if TQ != '1' else '')
    for s in range(4):
        e.wait(vm=[('x', s)])
        e.bstore(4 + 4*s, 4, 3, 12, 34 + s, 1024*s)
    if TQ: e.wait(vm0=True)
    e.label(f"{name}_end")
    e.raw("    s_endpgm")
    return e.text()
```

```python
from emit import *
from emit import EXP1
import math, struct
def f2u(f): return struct.unpack('<I', struct.pack('<f', f))[0]
CSC = math.log2(math.e) / math.sqrt(128.0)
THR = 8.0 / CSC

SLOT = 16384
KVB = 16384
Q9B = 0
MLB = 4096
LDS1 = 81920
R_O, R_SA, R_SB, R_Q, R_F, R_O9 = 0, 64, 96, 128, 160, 192
R_QA = 160
R_TA = 224
S9A, S9B, P9 = 224, 228, 232
M9, L9, M_, L_, MC, MC9 = 234, 235, 236, 237, 238, 239
T0 = 240
vKA, vVA, vK9, vV9, vDK, vDV, vL, vT2 = 248, 249, 250, 251, 252, 253, 254, 255
vAW, vDW, vX = 96, 104, 106
sK, sV, sW, sO = 12, 16, 20, 24
sWV, sBR, sB, sH, sXO, sWO, sKO, sLW, sC, sTH = 28, 29, 30, 31, 32, 34, 35, 36, 37, 38
sT0, sT1, sT2 = 40, 41, 42
sKX = 44
import os
KVFL = os.environ.get("KVFL", " nt")
WQFL = os.environ.get("WQFL", "")
XFL = os.environ.get("XFL", "")
OSFL = os.environ.get("OSFL", "")
WOPF = os.environ.get("WOPF", "1")
OPAD = int(os.environ.get('OPAD', '0'))
QS = 65536 + OPAD
TS = 4*QS
XF = (144*TS + 65535) // 65536 * 65536
WSZ = XF + 6553600
def load_ptrs(e):
    e.s("s_load_dwordx16 s[64:79], s[0:1], 0", w=S(64, 16))
    e.s("s_load_dwordx4 s[80:83], s[0:1], 64", w=S(80, 4))
    e.s("s_load_dwordx2 s[84:85], s[0:1], 80", w=S(84, 2))
    e.s("s_load_dwordx2 s[86:87], s[0:1], 96", w=S(86, 2))

def mk_srd(e, d, a, b, size):
    if b is None:
        e.s(f"s_mov_b32 s{d}, s{a}"); e.s(f"s_and_b32 s{d+1}, s{a+1}, 0xffff")
    else:
        e.s(f"s_cselect_b32 s{d}, s{a}, s{b}"); e.s(f"s_cselect_b32 s{d+1}, s{a+1}, s{b+1}")
    e.s(f"s_mov_b32 s{d+2}, {size}"); e.s(f"s_mov_b32 s{d+3}, 0x00020000")


def gen_k1(name):
    e = Em(); e.abl = True
    e.label(name)
    e.s("s_cmp_ge_u32 s2, 1024"); e.s(f"s_cbranch_scc1 {name}_end")
    load_ptrs(e)
    PR = os.environ.get('K1PRIO', '')
    if PR:
        lo, hi = PR.split('-')
        e.s(f"s_cmp_lt_u32 s2, {lo}"); e.s(f"s_cbranch_scc1 {name}_np")
        e.s(f"s_cmp_ge_u32 s2, {hi}"); e.s(f"s_cbranch_scc1 {name}_np")
        e.s("s_setprio 2")
        e.label(f"{name}_np")
    if 'stamp' in EXP1:
        e.s("s_memtime s[90:91]"); e.s("s_memrealtime s[92:93]"); e.s("s_load_dwordx2 s[88:89], s[0:1], 88")
    def vv(t, w, r=()): e.v(t, w=V(w), r=[x for a in r for x in V(a)])
    vv(f"v_and_b32 v{vL}, 63, v0", vL, [0])
    vv(f"v_lshrrev_b32 v{T0}, 6, v0", T0, [0])
    e.ins(f"v_readfirstlane_b32 s{sWV}, v{T0}", 'rdlane', w=S(sWV), r=V(T0))
    e.s("s_and_b32 s3, s2, 7"); e.s("s_lshr_b32 s4, s2, 3")
    e.s(f"s_lshr_b32 s{sBR}, s3, 2")
    e.s("s_and_b32 s3, s3, 3"); e.s("s_lshl_b32 s3, s3, 3"); e.s("s_and_b32 s5, s4, 7")
    e.s(f"s_add_u32 s{sH}, s3, s5"); e.s(f"s_lshr_b32 s{sB}, s4, 3")
    e.s(f"s_mov_b32 s{sC}, {f2u(CSC)}"); e.s(f"s_mov_b32 s{sTH}, {f2u(THR)}")
    e.s(f"s_lshl_b32 s3, s{sBR}, 4"); e.s(f"s_add_u32 s3, s3, s{sB}"); e.s("s_mul_i32 s3, s3, 204800"); e.s(f"s_add_u32 s{sXO+1}, s3, {XF + 4*40960}")
    e.s(f"s_mul_i32 s4, s{sWV}, 40960", r=S(sWV)); e.s("s_add_u32 s3, s3, s4"); e.s(f"s_add_u32 s{sXO}, s3, {XF}")
    e.s(f"s_lshl_b32 s{sLW}, s{sWV}, 12")
    e.s(f"s_lshl_b32 s3, s{sWV}, 16"); e.s(f"s_lshl_b32 s4, s{sH}, 8"); e.s(f"s_add_u32 s{sWO}, s3, s4")
    e.s(f"s_lshl_b32 s3, s{sB}, 5"); e.s(f"s_add_u32 s3, s3, s{sH}"); e.s("s_lshl_b32 s3, s3, 17")
    e.s(f"s_add_u32 s{sKO}, s3, s{sLW}")
    e.s(f"s_lshl_b32 s39, s{sWV}, 11")
    A, Bq, C_, D_, E_, F_, X1, X2 = [T0 + i for i in range(8)]
    vv(f"v_lshrrev_b32 v{A}, 4, v{vL}", A, [vL])
    vv(f"v_and_b32 v{Bq}, 15, v{vL}", Bq, [vL])
    vv(f"v_xor_b32 v{C_}, v{A}, v{Bq}", C_, [A, Bq])
    vv(f"v_lshlrev_b32 v{C_}, 4, v{C_}", C_, [C_])
    vv(f"v_lshl_add_u32 v{vDK}, v{A}, 8, v{C_}", vDK, [A, C_])
    vv(f"v_lshl_add_u32 v{vK9}, v{Bq}, 8, v{C_}", vK9, [Bq, C_])
    vv(f"v_lshlrev_b32 v{C_}, 2, v{A}", C_, [A])
    vv(f"v_xor_b32 v{C_}, v{C_}, v{Bq}", C_, [C_, Bq])
    vv(f"v_lshlrev_b32 v{C_}, 4, v{C_}", C_, [C_])
    vv(f"v_lshl_add_u32 v{vDV}, v{A}, 8, v{C_}", vDV, [A, C_])
    vv(f"v_lshl_add_u32 v{vDW}, v{A}, 13, v{C_}", vDW, [A, C_])
    vv(f"v_xor_b32 v{vDW+1}, 32, v{vDW}", vDW+1, [vDW])
    vv(f"v_and_b32 v{C_}, 31, v{vL}", C_, [vL])
    vv(f"v_lshrrev_b32 v{D_}, 5, v{vL}", D_, [vL])
    vv(f"v_lshlrev_b32 v{vX}, 4, v{vL}", vX, [vL])
    e.wait(lg0=True)
    e.s(f"s_cmp_eq_u32 s{sBR}, 0")
    mk_srd(e, sK, 66, 76, 67108864); mk_srd(e, sV, 68, 78, 67108864)
    mk_srd(e, sW, 70, 80, 5242880); mk_srd(e, sO, 86, None, WSZ)
    seq = [('K', 0)]
    for j in range(7): seq += [('K', j + 1), ('V', j)]
    seq += [('V', 7)]
    def slot_of(n): return ((n + 3) % 4) * SLOT
    DT = [107, 108]
    def issue_kv(n, us=(0, 1, 2, 3), tmp=None):
        if n > 15: return
        kind, j = seq[n]
        tmp = tmp or DT
        e.s(f"s_add_u32 s{sT0}, s{sKO}, {j*16384}", w=S(sT0))
        e.s(f"s_add_u32 m0, s{sLW}, {KVB + slot_of(n)}", w=[('m0', 0)])
        for u in us:
            x = (64*u) if kind == 'K' else (32*(u & 1))
            base = vDK if kind == 'K' else vDV
            a = base
            if x:
                a = tmp[u & 1]
                vv(f"v_xor_b32 v{a}, {x}, v{base}", a, [base])
            e.dma(a, sK if kind == 'K' else sV, sT0, u*1024, ('kv', n), KVFL)
    RING = int(os.environ.get('RING', '8'))
    E1, E2 = [int(x) for x in os.environ.get('RE', '2,5').split(',')]
    def wsub(c): return (16384 + (8 - RING) * 8192 + ((c - 12 - (8 - RING)) % RING) * 8192) % 65536
    QD = {8: 6, 6: 5, 4: 3}[RING]
    KVS = {8: {14: 1, 16: 2, 18: 3}, 6: {E1: 1, 16: 2, 18: 3}, 4: {E1: 1, E2: 2, 18: 3}}[RING]
    XBUF = [0, 12, 24, 36, 48, 116, 128]
    R_TO = 144
    def issue_w(c):
        if c > 19: return
        for u in range(2):
            e.s(f"s_add_u32 s{sT0}, s{sWO}, {c*262144 + u*32768}", w=S(sT0))
            e.s(f"s_add_u32 m0, s39, {wsub(c) + u*1024}", w=[('m0', 0)])
            if 'nowd' not in EXP1: e.dma(vDW + u, sW, sT0, 0, ('w', c), WQFL)
        e.s(f"s_add_u32 s{sT1}, s{sXO}, {c*2048}", w=S(sT1))
        e.s(f"s_add_u32 s{sT2}, s{sXO+1}, {c*1024}", w=S(sT2))
        b0 = XBUF[c % 7]
        for s in range(2): e.bload(b0 + 4*s, 4, vX, sO, sT1, 1024*s, ('w', c), XFL)
        e.bload(b0 + 8, 4, vX, sO, sT2, 0, ('w', c), XFL)
    for c in range(QD): issue_w(c)
    issue_kv(0)
    if os.environ.get('K1TOUCH', '0') == '1':
        e.s(f"s_add_u32 m0, s{sLW}, {KVB + 3*SLOT}", w=[('m0', 0)])
        e.s(f"s_and_b32 s3, s{sH}, 7", w=S(3)); e.s("s_mul_i32 s3, s3, 25600", w=S(3)); e.s(f"s_mul_i32 s4, s{sWV}, 6400", w=S(4))
        e.s("s_add_u32 s3, s3, s4", w=S(3)); e.s(f"s_add_u32 s3, s3, s{sXO+1}", w=S(3)); e.s(f"s_sub_u32 s3, s3, {4*40960}", w=S(3))
        e.s("s_add_u32 s4, s3, 3072", w=S(4))
        for k in range(3): e.dma(vX, sO, 3, 1024*k, 'touch')
        for k in range(4): e.dma(vX, sO, 4, 1024*k, 'touch')
        e.s(f"s_and_b32 s3, s{sB}, 7", w=S(3)); e.s("s_mul_i32 s3, s3, 80", w=S(3)); e.s(f"s_mul_i32 s4, s{sWV}, 20", w=S(4))
        e.s("s_add_u32 s3, s3, s4", w=S(3)); e.s("s_lshl_b32 s3, s3, 13", w=S(3)); e.s(f"s_lshl_b32 s4, s{sH}, 8", w=S(4)); e.s("s_add_u32 s3, s3, s4", w=S(3))
        for k in range(5):
            e.dma(vDW, sW, 3, 0, 'touch')
            if k < 4: e.s("s_add_u32 s3, s3, 32768", w=S(3))
    R4, CC, DH, LOWC, SUB = E_, F_, 110, 111, 112
    vv(f"v_lshrrev_b32 v{R4}, 2, v{Bq}", R4, [Bq])
    vv(f"v_and_b32 v{CC}, 3, v{vL}", CC, [vL])
    vv(f"v_and_b32 v{DH}, 1, v{A}", DH, [A])
    vv(f"v_and_b32 v{LOWC}, 1, v{CC}", LOWC, [CC])
    vv(f"v_lshl_add_u32 v{LOWC}, v{DH}, 1, v{LOWC}", LOWC, [DH, LOWC])
    vv(f"v_lshrrev_b32 v{SUB}, 1, v{CC}", SUB, [CC])
    vv(f"v_lshlrev_b32 v{SUB}, 3, v{SUB}", SUB, [SUB])
    for u in range(4):
        e.s(f"s_add_u32 s3, s{sWV}, {u}", w=S(3)); e.s("s_and_b32 s3, s3, 3", w=S(3))
        e.s(f"s_lshl_b32 s{sKX+2*u}, s3, 6", w=S(sKX+2*u)); e.s(f"s_xor_b32 s{sKX+2*u+1}, s{sKX+2*u}, 32", w=S(sKX+2*u+1))
        vv(f"v_xor_b32 v{X1}, s3, v{R4}", X1, [R4])
        for ee in range(2):
            d = vAW + 2*u + ee
            vv(f"v_xor_b32 v{X2}, {2*ee}, v{LOWC}", X2, [LOWC])
            vv(f"v_lshl_add_u32 v{X2}, v{X1}, 2, v{X2}", X2, [X1, X2])
            vv(f"v_lshl_add_u32 v{X2}, v{X2}, 4, v{SUB}", X2, [X2, SUB])
            vv(f"v_lshl_add_u32 v{X2}, v{R4}, 8, v{X2}", X2, [R4, X2])
            vv(f"v_lshl_add_u32 v{d}, v{D_}, 12, v{X2}", d, [D_, X2])
            if ee: vv(f"v_add_u32 v{d}, 1024, v{d}", d, [d])
    vv(f"v_lshlrev_b32 v{X2}, 1, v{D_}", X2, [D_])
    vv(f"v_xor_b32 v{X2}, v{X2}, v{LOWC}", X2, [X2, LOWC])
    vv(f"v_lshl_add_u32 v{X2}, v{R4}, 2, v{X2}", X2, [R4, X2])
    vv(f"v_lshl_add_u32 v{X2}, v{X2}, 4, v{SUB}", X2, [X2, SUB])
    vv(f"v_lshl_add_u32 v{X2}, v{R4}, 8, v{X2}", X2, [R4, X2])
    vv(f"v_lshl_add_u32 v{X2}, v{D_}, 10, v{X2}", X2, [D_, X2])
    vv(f"v_add_u32 v{vVA}, {KVB}, v{X2}", vVA, [X2])
    vv(f"v_lshrrev_b32 v{X1}, 1, v{CC}", X1, [CC])
    vv(f"v_lshl_or_b32 v{X1}, v{R4}, 2, v{X1}", X1, [R4, X1])
    vv(f"v_lshlrev_b32 v{X2}, 1, v{DH}", X2, [DH])
    vv(f"v_xor_b32 v{X1}, v{X1}, v{X2}", X1, [X1, X2])
    vv(f"v_and_b32 v{X2}, 1, v{CC}", X2, [CC])
    vv(f"v_lshlrev_b32 v{X2}, 3, v{X2}", X2, [X2])
    vv(f"v_lshl_add_u32 v{X1}, v{X1}, 4, v{X2}", X1, [X1, X2])
    vv(f"v_lshl_add_u32 v{X1}, v{R4}, 8, v{X1}", X1, [R4, X1])
    vv(f"v_lshl_add_u32 v{X1}, v{A}, 10, v{X1}", X1, [A, X1])
    e.s(f"s_add_u32 s43, s{sLW}, {KVB}", w=S(43))
    vv(f"v_add_u32 v{vV9}, s43, v{X1}", vV9, [X1])
    e.s(f"s_lshl_b32 s3, s{sWV}, 2", w=S(3))
    vv(f"v_add_u32 v{X1}, s3, v{D_}", X1, [D_])
    vv(f"v_xor_b32 v{X1}, v{X1}, v{Bq}", X1, [X1, Bq])
    vv(f"v_lshlrev_b32 v{X1}, 4, v{X1}", X1, [X1])
    vv(f"v_lshl_add_u32 v{vT2}, v{Bq}, 8, v{X1}", vT2, [Bq, X1])
    vv(f"v_xor_b32 v{X1}, v{D_}, v{Bq}", X1, [D_, Bq])
    vv(f"v_lshlrev_b32 v{X1}, 4, v{X1}", X1, [X1])
    vv(f"v_lshl_add_u32 v{X1}, v{C_}, 8, v{X1}", X1, [C_, X1])
    vv(f"v_add_u32 v{vKA}, {KVB}, v{X1}", vKA, [X1])
    AFB = 64
    def qsync(c):
        if c > 19: return
        e.wait(vm=[('w', c)])
        e.barrier()
    def qrd(k):
        if k >= 40: return
        c, s = divmod(k, 2)
        for u in range(4):
            for ee in range(2):
                e.dsr("ds_read_b64_tr_b16", AFB + 16*(k % 2) + 4*u + 2*ee, 2, vAW + 2*u + ee, wsub(c) + 2048*s, ('a', k, u))
    QP = os.environ.get("K1QPRIO", "0")
    if QP != '0': e.s(f's_setprio {QP}')
    KVT = [int(x) for x in os.environ.get('KVT', '').split(',') if x]
    KVTF = os.environ.get('KVTF', ' nt')
    if KVT:
        vv(f"v_lshlrev_b32 v109, 7, v{vL}", 109, [vL])
        e.s(f"s_add_u32 s52, s{sKO}, s{sLW}", w=S(52))
    qsync(0); qrd(0); qrd(1)
    for k in range(40):
        c, s = divmod(k, 2)
        xb = XBUF[c % 7]
        for u in range(4):
            e.wait(lg=[('a', k, u)])
            a = AFB + 16*(k % 2) + 4*u
            e.mfma32(R_QA + 16*u, a, xb + 4*s, None if k == 0 else R_QA + 16*u)
            if u == 0:
                ta = R_TA if s == 0 else R_TO
                e.mfma32(ta, a, xb + 8, None if k < 2 else ta)
            if u == 1 and s == 0:
                qsync(c + 1)
                if c + 1 > 19: e.barrier()
                for t in range(8):
                    if KVT and KVT[t] == c:
                        assert c <= 13
                        e.s(f"s_add_u32 s{sT0}, s52, {(t >> 1)*32768}", w=S(sT0))
                        e.bload(113, 1, 109, sV if t & 1 else sK, sT0, 0, 'kvt', KVTF)
                issue_w(c + QD)
                if c in KVS: issue_kv(KVS[c])
        qrd(k + 2)
    if 'stamp' in EXP1: e.s('s_memrealtime s[98:99]'); e.wait(lg0=True)
    TT = 64
    if QP != '0': e.s('s_setprio 0')
    for k in range(16): e.v(f"v_mov_b32 v{TT+k}, v{R_TA+k}", w=V(TT+k), r=V(R_TA+k))
    for k in range(16): e.ins(f"v_permlane16_swap_b32 v{R_TO+k}, v{TT+k}", 'perm', w=V(R_TO+k) + V(TT+k), r=V(R_TO+k) + V(TT+k))
    for k in range(16): e.v(f"v_add_f32 v{R_TA+k}, v{R_TA+k}, v{TT+k}", w=V(R_TA+k), r=V(R_TA+k) + V(TT+k))
    for k in range(8):
        e.v(f"v_cvt_pk_bf16_f32 v{R_SB+k}, v{R_TA+2*k}, v{R_TA+2*k+1}", w=V(R_SB+k), r=V(R_TA+2*k, 2))
    e.v(f"v_xor_b32 v{T0}, 32, v{vT2}", w=V(T0), r=V(vT2))
    e.wait(lg0=True); e.barrier()
    e.s("s_mov_b32 exec_lo, 0xffff"); e.s("s_mov_b32 exec_hi, 0xffff"); e.nop(1)
    e.dsw("ds_write_b128", vT2, R_SB, 4, Q9B); e.dsw("ds_write_b128", T0, R_SB + 4, 4, Q9B)
    e.s("s_mov_b64 exec, -1"); e.nop(1)
    for k in range(32):
        e.v(f"v_cvt_pk_bf16_f32 v{R_Q+k}, v{R_QA+2*k}, v{R_QA+2*k+1}", w=V(R_Q+k), r=V(R_QA+2*k, 2))
    NB = 8
    AT = [T0+6, T0+7]
    DT[:] = [T0+4, T0+5]
    reads = []
    mf = []
    atog = [0]
    def addr(base, x, sg=None):
        if sg is None and x == 0: return base
        a = AT[atog[0]]; atog[0] ^= 1
        if sg is not None: vv(f"v_xor_b32 v{a}, s{sg}, v{base}", a, [base])
        else: vv(f"v_xor_b32 v{a}, {x}, v{base}", a, [base])
        return a
    def add_K(n, j):
        sb = slot_of(n); RS = R_SA if j % 2 == 0 else R_SB; s9 = S9A if j % 2 == 0 else S9B
        for s in range(4):
            st = {}
            def rq(d, i, s=s, st=st):
                st['a'] = addr(vK9, 64*s); e.dsr("ds_read_b128", d, 4, st['a'], Q9B, ('r', i))
            def rk(d, i, s=s, st=st):
                a = AT[atog[0]]; atog[0] ^= 1
                vv(f"v_add_u32 v{a}, s43, v{st['a']}", a, [st['a']]); e.dsr("ds_read_b128", d, 4, a, sb, ('r', i))
            reads.append((n, rq)); reads.append((n, rk))
            mf.append(([len(reads)-2, len(reads)-1], lambda r, s=s: e.mfma16(s9, r[1], r[0], None if s == 0 else s9), 0.5))
        for s in range(8):
            st = {}
            def r0(d, i, s=s, st=st):
                st['a'] = addr(vKA, 0, sKX + s); e.dsr("ds_read_b128", d, 4, st['a'], sb, ('r', i))
            def r1(d, i, s=s, st=st): e.dsr("ds_read_b128", d, 4, st['a'], sb + 8192, ('r', i))
            for kt, rf in enumerate((r0, r1)):
                reads.append((n, rf))
                mf.append(([len(reads)-1], lambda r, s=s, kt=kt: e.mfma32(RS + 16*kt, r[0], R_Q + 4*s, None if s == 0 else RS + 16*kt), 1))
    def add_V(n, j):
        sb = slot_of(n); RS = R_SA if j % 2 == 0 else R_SB
        for t in range(0, 8, 2):
            def r9(d, i, t=t):
                for ee in range(2):
                    a = addr(vV9, 32*(t+ee)); e.dsr("ds_read_b64_tr_b16", d + 2*ee, 2, a, sb, ('r', i))
            reads.append((n, r9))
            def m9(r, t=t):
                for ee in range(2): e.mfma16k16(R_O9 + 4*(t+ee), r[0] + 2*ee, P9, None if j == 0 else R_O9 + 4*(t+ee))
            mf.append(([len(reads)-1], m9, 1))
        for s in range(4):
            for t in range(4):
                def rv(d, i, s=s, t=t):
                    a = addr(vVA, 64*t)
                    for ee in range(2): e.dsr("ds_read_b64_tr_b16", d + 2*ee, 2, a, sb + 4096*s + 2048*ee, ('r', i))
                reads.append((n, rv))
                mf.append(([len(reads)-1], lambda r, s=s, t=t: e.mfma32(R_O + 16*t, r[0], RS + 8*s, None if (j == 0 and s == 0) else R_O + 16*t), 1))
    marks = {}
    for n, (kind, j) in enumerate(seq):
        marks[(kind, j)] = len(mf)
        (add_K if kind == 'K' else add_V)(n, j)
    resc = []
    def softmax(j):
        RS = R_SA if j % 2 == 0 else R_SB; s9 = S9A if j % 2 == 0 else S9B
        BM, B2, BM9, B29 = T0, T0+1, T0+2, T0+3
        ops = []
        def o(f): ops.append(f)
        def V_(txt, w, r): o(lambda: e.v(txt, w=w, r=r))
        def P_(txt, a, b): o(lambda: e.ins(txt, 'perm', w=V(a) + V(b), r=V(a) + V(b)))
        V_(f"v_max3_f32 v{BM9}, v{s9}, v{s9+1}, v{s9+2}", V(BM9), V(s9, 3))
        V_(f"v_max_f32 v{BM9}, v{BM9}, v{s9+3}", V(BM9), V(BM9) + V(s9+3))
        V_(f"v_mov_b32 v{B29}, v{BM9}", V(B29), V(BM9))
        V_(f"v_max3_f32 v{BM}, v{RS}, v{RS+1}, v{RS+2}", V(BM), V(RS, 3))
        V_(f"v_max3_f32 v{B2}, v{RS+3}, v{RS+4}, v{RS+5}", V(B2), V(RS+3, 3))
        P_(f"v_permlane32_swap_b32 v{BM9}, v{B29}", BM9, B29)
        k = 6; tog = 0
        while k < 32:
            d = BM if tog == 0 else B2
            V_(f"v_max3_f32 v{d}, v{d}, v{RS+k}, v{RS+k+1}", V(d), V(d) + V(RS+k, 2)); k += 2; tog ^= 1
            if k == 8:
                V_(f"v_max_f32 v{BM9}, v{BM9}, v{B29}", V(BM9), V(BM9) + V(B29))
                V_(f"v_mov_b32 v{B29}, v{BM9}", V(B29), V(BM9))
            if k == 14: P_(f"v_permlane16_swap_b32 v{BM9}, v{B29}", BM9, B29)
            if k == 16: V_(f"v_max_f32 v{BM9}, v{BM9}, v{B29}", V(BM9), V(BM9) + V(B29))
            if k == 18 and j > 0: V_(f"v_sub_f32 v{B29}, v{BM9}, v{M9}", V(B29), V(BM9) + V(M9))
        V_(f"v_max_f32 v{BM}, v{BM}, v{B2}", V(BM), V(BM) + V(B2))
        V_(f"v_mov_b32 v{B2}, v{BM}", V(B2), V(BM))
        ops.append('gap')
        P_(f"v_permlane32_swap_b32 v{BM}, v{B2}", BM, B2)
        V_(f"v_max_f32 v{BM}, v{BM}, v{B2}", V(BM), V(BM) + V(B2))
        if j == 0:
            V_(f"v_mov_b32 v{M_}, v{BM}", V(M_), V(BM)); V_(f"v_mov_b32 v{M9}, v{BM9}", V(M9), V(BM9))
            V_(f"v_mul_f32 v{MC}, s{sC}, v{BM}", V(MC), V(BM)); V_(f"v_mul_f32 v{MC9}, s{sC}, v{BM9}", V(MC9), V(BM9))
        else:
            V_(f"v_sub_f32 v{B2}, v{BM}, v{M_}", V(B2), V(BM) + V(M_))
            V_(f"v_max_f32 v{B2}, v{B2}, v{B29}", V(B2), V(B2) + V(B29))
            V_(f"v_cmp_lt_f32 vcc, s{sTH}, v{B2}", [('vcc', 0)], V(B2))
            ops.append('gap')
            def br():
                e.nop(2); e.s(f"s_cbranch_vccnz {name}_rs{j}"); e.label(f"{name}_rb{j}"); resc.append(j)
            o(br)
        LA, LB = T0, T0+1
        def fma(r, mc): V_(f"v_fma_f32 v{r}, v{r}, s{sC}, -v{mc}", V(r), V(r) + V(mc))
        def ex(r): o(lambda: e.t(f"v_exp_f32 v{r}, v{r}", w=V(r), r=V(r)))
        for k in range(4): fma(s9 + k, MC9)
        for k in range(4): ex(s9 + k)
        need = {}
        for g8 in range(4):
            b0 = RS + 8*g8
            for k in range(8): fma(b0 + k, MC)
            if g8 == 0:
                V_(f"v_add_f32 v{B29}, v{s9}, v{s9+1}", V(B29), V(s9, 2))
                V_(f"v_add_f32 v{BM9}, v{s9+2}, v{s9+3}", V(BM9), V(s9+2, 2))
                V_(f"v_cvt_pk_bf16_f32 v{P9}, v{s9}, v{s9+1}", V(P9), V(s9, 2))
                V_(f"v_cvt_pk_bf16_f32 v{P9+1}, v{s9+2}, v{s9+3}", V(P9+1), V(s9+2, 2))
                if j == 0: V_(f"v_add_f32 v{L9}, v{B29}, v{BM9}", V(L9), V(B29) + V(BM9))
                else:
                    V_(f"v_add_f32 v{B29}, v{B29}, v{BM9}", V(B29), V(B29) + V(BM9))
                    V_(f"v_add_f32 v{L9}, v{L9}, v{B29}", V(L9), V(L9) + V(B29))
                need['t'] = len(ops)
            for k in range(8): ex(b0 + k)
            for k in range(4):
                a, b = b0 + 2*k, b0 + 2*k + 1
                if g8 == 0 and k == 0:
                    if j == 0: V_(f"v_mov_b32 v{L_}, v{a}", V(L_), V(a))
                    else: V_(f"v_add_f32 v{L_}, v{L_}, v{a}", V(L_), V(L_) + V(a))
                    V_(f"v_mov_b32 v{LB}, v{b}", V(LB), V(b))
                else:
                    V_(f"v_add_f32 v{L_}, v{L_}, v{a}", V(L_), V(L_) + V(a)); V_(f"v_add_f32 v{LB}, v{LB}, v{b}", V(LB), V(LB) + V(b))
                V_(f"v_cvt_pk_bf16_f32 v{b0+k}, v{a}, v{b}", V(b0+k), V(a) + V(b))
            need[g8] = len(ops)
        V_(f"v_add_f32 v{L_}, v{L_}, v{LB}", V(L_), V(L_) + V(LB))
        return ops, need
    nm = len(mf)
    plan = [[] for _ in range(nm + 1)]
    for j in range(8):
        ops, need = softmax(j)
        ops = [x for x in ops]
        start = marks[('K', j)] + 21
        if j > 0: start = max(start, marks[('V', j-1)] + (21 if j < 7 else 20))
        v0 = marks[('V', j)]
        dl = [(need['t'], v0), (need[0], v0 + 4), (need[1], v0 + 8), (need[2], v0 + 12), (need[3], v0 + 16), (len(ops), v0 + 18)]
        done = 0
        import math as _m
        for sl in range(start, v0 + 19):
            req = 0
            for cnt, dline in dl:
                if dline >= sl and cnt > done:
                    tot = sum(mf[i-1][2] for i in range(sl, dline + 1))
                    req = max(req, int(_m.ceil((cnt - done) * mf[sl-1][2] / tot - 1e-9)))
            plan[sl] += ops[done:done + req]; done += req
        assert done == len(ops)
    synced = [-1]
    DELAY = int(os.environ.get('K1DELAY', '2'))
    def do_read(i):
        n, fn = reads[i]
        if n > synced[0]:
            e.wait(vm=[('kv', n)], lg0=True); e.barrier(); synced[0] = n
            if n >= 1: issue_kv(n + 3)
            if n == 4 and WOPF == "2":
                e.s("s_cmp_lt_u32 s2, 512")
                mk_srd(e, sW, 72, 82, 5242880)
                e.s("s_and_b32 s3, s2, 511"); e.s("s_mul_i32 s3, s3, 10240"); e.s(f"s_mul_i32 s4, s{sWV}, 2560"); e.s("s_add_u32 s3, s3, s4", w=S(3))
                e.s("s_mov_b32 m0, 8192", w=[('m0', 0)])
                vv(f"v_lshlrev_b32 v{DT[0]}, 4, v{vL}", DT[0], [vL])
                for k in range(3): e.dma(DT[0], sW, 3, 1024*k, 'pf')
        fn(R_F + 4*(i % NB), i)
    for i in range(NB): do_read(i)
    nxt = NB; free = 0; hold = 0
    for i in range(nm):
        for op in plan[i]:
            if op != 'gap': op()
        rd, fn, _ = mf[i]
        e.wait(lg=[('r', x) for x in rd])
        fn([R_F + 4*(x % NB) for x in rd])
        free += len(rd)
        while free > 0 and nxt < len(reads):
            if reads[nxt][0] > synced[0] and hold < DELAY:
                hold += 1; break
            hold = 0
            do_read(nxt); nxt += 1; free -= 1
    for op in plan[nm]:
        if op != 'gap': op()
    if 'stamp' in EXP1: e.s('s_memrealtime s[100:101]')
    e.wait(lg0=True); e.barrier()
    if WOPF == "1":
        e.s("s_cmp_ge_u32 s2, 512"); e.s(f"s_cbranch_scc1 {name}_nopf")
        e.s("s_cmp_lt_u32 s2, 256")
        mk_srd(e, sW, 72, 82, 5242880)
        e.s("s_and_b32 s3, s2, 255"); e.s("s_mul_i32 s3, s3, 20480"); e.s(f"s_mul_i32 s4, s{sWV}, 5120"); e.s("s_add_u32 s3, s3, s4", w=S(3))
        e.s("s_add_u32 s4, s3, 4096", w=S(4))
        e.v(f"v_lshlrev_b32 v{T0}, 4, v{vL}", w=V(T0), r=V(vL))
        for k in range(4): e.bload(R_Q + 4*k, 4, T0, sW, 3, 1024*k, 'pf')
        e.bload(R_Q + 16, 4, T0, sW, 4, 0, 'pf')
        e.label(f"{name}_nopf")
        e.nop(2)
    X1, X2, X3, X4 = T0, T0+1, T0+2, T0+3
    e.v(f"v_mov_b32 v{X1}, v{L9}", w=V(X1), r=V(L9))
    e.v(f"v_mov_b32 v{X2}, v{L_}", w=V(X2), r=V(L_))
    e.ins(f"v_permlane32_swap_b32 v{L9}, v{X1}", 'perm', w=V(L9) + V(X1), r=V(L9) + V(X1))
    e.ins(f"v_permlane32_swap_b32 v{L_}, v{X2}", 'perm', w=V(L_) + V(X2), r=V(L_) + V(X2))
    e.v(f"v_add_f32 v{L9}, v{L9}, v{X1}", w=V(L9), r=V(L9) + V(X1))
    e.v(f"v_add_f32 v{L_}, v{L_}, v{X2}", w=V(L_), r=V(L_) + V(X2))
    e.v(f"v_mov_b32 v{X1}, v{L9}", w=V(X1), r=V(L9))
    e.t(f"v_rcp_f32 v{L_}, v{L_}", w=V(L_), r=V(L_))
    e.ins(f"v_permlane16_swap_b32 v{L9}, v{X1}", 'perm', w=V(L9) + V(X1), r=V(L9) + V(X1))
    e.v(f"v_add_f32 v{L9}, v{L9}, v{X1}", w=V(L9), r=V(L9) + V(X1))
    q16, gg = X1, X2
    e.v(f"v_and_b32 v{q16}, 15, v{vL}", w=V(q16), r=V(vL))
    e.v(f"v_lshrrev_b32 v{gg}, 4, v{vL}", w=V(gg), r=V(vL))
    e.s(f"s_mul_i32 s3, s{sWV}, 8448", w=S(3)); e.s(f"s_add_u32 s3, s3, {KVB}", w=S(3)); e.s("s_movk_i32 s4, 528", w=S(4))
    e.v(f"v_mul_lo_u32 v{X3}, v{q16}, s4", w=V(X3), r=V(q16))
    e.v(f"v_lshl_add_u32 v{X4}, v{gg}, 4, v{X3}", w=V(X4), r=V(gg) + V(X3))
    e.v(f"v_add_u32 v{X4}, s3, v{X4}", w=V(X4), r=V(X4))
    for t9 in range(8): e.dsw("ds_write_b128", X4, R_O9 + 4*t9, 4, 64*t9)
    e.s(f"s_lshl_b32 s3, s{sWV}, 7", w=S(3)); e.s(f"s_add_u32 s3, s3, {MLB}", w=S(3))
    e.v(f"v_lshlrev_b32 v{X4}, 3, v{q16}", w=V(X4), r=V(q16))
    e.v(f"v_add_u32 v{(T0+5)}, s3, v{X4}", w=V((T0+5)), r=V(X4))
    e.v(f"v_mov_b32 v{M9}, v{MC9}", w=V(M9), r=V(MC9))
    e.dsw("ds_write_b64", (T0+5), M9, 2, 0)
    e.s(f"s_mul_i32 s3, s{sBR}, 72", w=S(3)); e.s(f"s_lshl_b32 s4, s{sB}, 2", w=S(4)); e.s("s_add_u32 s4, s4, s3", w=S(4))
    e.s(f"s_add_u32 s4, s4, s{sWV}", w=S(4)); e.s(f"s_mul_i32 s4, s4, {TS}" if OPAD else "s_lshl_b32 s4, s4, 18", w=S(4))
    e.s(f"s_lshl_b32 s5, s{sH}, 13", w=S(5));
    if OPAD:
        e.s(f"s_lshr_b32 s{sT0}, s{sH}, 3", w=S(sT0)); e.s(f"s_mul_i32 s{sT0}, s{sT0}, {OPAD}", w=S(sT0)); e.s(f"s_add_u32 s5, s5, s{sT0}", w=S(5))
    e.s(f"s_add_u32 s{sT0}, s4, s5", w=S(sT0))
    e.s(f"s_add_u32 s{sT1}, s{sT0}, 4096", w=S(sT1))
    e.s(f"s_lshr_b32 s4, s{sB}, 1", w=S(4)); e.s("s_add_u32 s4, s4, s3", w=S(4)); e.s("s_add_u32 s4, s4, 64", w=S(4))
    e.s(f"s_mul_i32 s4, s4, {TS}" if OPAD else "s_lshl_b32 s4, s4, 18", w=S(4)); e.s(f"s_add_u32 s{sT2}, s4, s5", w=S(sT2))
    e.v(f"v_lshlrev_b32 v{vT2}, 4, v{vL}", w=V(vT2), r=V(vL))
    for ks in range(8):
        b0 = R_O + 8*ks
        for k in range(8): e.v(f"v_mul_f32 v{b0+k}, v{b0+k}, v{L_}", w=V(b0+k), r=V(b0+k) + V(L_))
        for k in range(4): e.v(f"v_cvt_pk_bf16_f32 v{b0+k}, v{b0+2*k}, v{b0+2*k+1}", w=V(b0+k), r=V(b0+2*k, 2))
        e.bstore(b0, 4, vT2, sO, sT0 if ks < 4 else sT1, 1024*(ks % 4), fl=OSFL)
    e.wait(lg0=True); e.barrier()
    B0 = R_SA
    e.v(f"v_lshlrev_b32 v{X4}, 3, v{q16}", w=V(X4), r=V(q16))
    e.v(f"v_add_u32 v{X4}, {MLB}, v{X4}", w=V(X4), r=V(X4))
    for w_ in range(4): e.dsr("ds_read_b64", B0 + 2*w_, 2, X4, 128*w_, 'ml')
    e.s(f"s_lshl_b32 s3, s{sWV}, 7", w=S(3))
    e.v(f"v_lshl_add_u32 v{X3}, v{gg}, 5, v{X3}", w=V(X3), r=V(gg) + V(X3))
    e.v(f"v_add_u32 v{X3}, s3, v{X3}", w=V(X3), r=V(X3))
    for w_ in range(4):
        for hh in range(2): e.dsr("ds_read_b128", R_F + 8*w_ + 4*hh, 4, X3, KVB + 8448*w_ + 16*hh, 'o9')
    e.wait(lg=['ml'])
    MM, LL = B0 + 8, B0 + 9
    e.v(f"v_max3_f32 v{MM}, v{B0}, v{B0+2}, v{B0+4}", w=V(MM), r=V(B0, 6))
    e.v(f"v_max_f32 v{MM}, v{MM}, v{B0+6}", w=V(MM), r=V(MM) + V(B0+6))
    for w_ in range(4): e.v(f"v_sub_f32 v{B0+2*w_}, v{B0+2*w_}, v{MM}", w=V(B0+2*w_), r=V(B0+2*w_) + V(MM))
    for w_ in range(4): e.t(f"v_exp_f32 v{B0+2*w_}, v{B0+2*w_}", w=V(B0+2*w_), r=V(B0+2*w_))
    e.v(f"v_mul_f32 v{LL}, v{B0}, v{B0+1}", w=V(LL), r=V(B0, 2))
    for w_ in range(1, 4): e.v(f"v_fmac_f32 v{LL}, v{B0+2*w_}, v{B0+2*w_+1}", w=V(LL), r=V(LL) + V(B0+2*w_, 2))
    e.t(f"v_rcp_f32 v{LL}, v{LL}", w=V(LL), r=V(LL))
    for w_ in range(4): e.v(f"v_mul_f32 v{B0+2*w_}, v{B0+2*w_}, v{LL}", w=V(B0+2*w_), r=V(B0+2*w_) + V(LL))
    e.wait(lg0=True)
    for k in range(8):
        e.v(f"v_mul_f32 v{R_F+k}, v{R_F+k}, v{B0}", w=V(R_F+k), r=V(R_F+k) + V(B0))
        for w_ in range(1, 4):
            e.v(f"v_fmac_f32 v{R_F+k}, v{R_F+8*w_+k}, v{B0+2*w_}", w=V(R_F+k), r=V(R_F+k) + V(R_F+8*w_+k) + V(B0+2*w_))
    for k in range(4): e.v(f"v_cvt_pk_bf16_f32 v{R_F+k}, v{R_F+2*k}, v{R_F+2*k+1}", w=V(R_F+k), r=V(R_F+2*k, 2))
    e.s(f"s_and_b32 s3, s{sB}, 1", w=S(3)); e.s("s_lshl_b32 s3, s3, 8", w=S(3))
    e.s(f"s_lshl_b32 s4, s{sWV}, 11", w=S(4)); e.s("s_add_u32 s3, s3, s4", w=S(3))
    e.v(f"v_lshlrev_b32 v{X3}, 9, v{gg}", w=V(X3), r=V(gg))
    e.v(f"v_lshl_add_u32 v{X3}, v{q16}, 4, v{X3}", w=V(X3), r=V(q16) + V(X3))
    e.v(f"v_add_u32 v{X3}, s3, v{X3}", w=V(X3), r=V(X3))
    e.bstore(R_F, 4, X3, sO, sT2, 0, fl=OSFL)
    if 'stamp' in EXP1:
        e.s("s_memtime s[94:95]"); e.s("s_memrealtime s[96:97]"); e.s("s_waitcnt lgkmcnt(0)")
        e.s("s_mov_b32 s88, s86"); e.s("s_mov_b32 s89, s87"); e.s("s_sub_u32 s94, s94, s90")
        e.s("s_mov_b32 s90, 0x8000000"); e.s("s_mov_b32 s91, 0x20000")
        e.s("s_lshl_b32 s3, s2, 4"); e.s("s_add_u32 s3, s3, 0x4000000")
        e.s("s_getreg_b32 s4, hwreg(HW_REG_HW_ID)"); e.s("s_getreg_b32 s5, hwreg(HW_REG_XCC_ID)")
        e.s("s_lshl_b32 s5, s5, 28"); e.s("s_and_b32 s4, s4, 0xfffffff"); e.s("s_or_b32 s4, s4, s5")
        e.v("v_mov_b32 v0, s92", w=V(0)); e.v("v_mov_b32 v1, s96", w=V(1)); e.v("v_mov_b32 v2, s98", w=V(2)); e.v("v_mov_b32 v3, s100", w=V(3)); e.v("v_mov_b32 v4, s3", w=V(4))
        e.nop(4)
        e.raw("    buffer_store_dwordx4 v[0:3], v4, s[88:91], 0 offen")
    e.label(f"{name}_end")
    e.raw("    s_endpgm")
    for j in resc:
        e.label(f"{name}_rs{j}")
        e.nop(16)
        BM, BM9, A1, A9 = T0, T0+2, T0+1, T0+3
        e.v(f"v_max_f32 v{BM}, v{BM}, v{M_}", w=V(BM), r=V(BM) + V(M_))
        e.v(f"v_max_f32 v{BM9}, v{BM9}, v{M9}", w=V(BM9), r=V(BM9) + V(M9))
        e.v(f"v_sub_f32 v{A1}, v{M_}, v{BM}", w=V(A1), r=V(M_) + V(BM))
        e.v(f"v_sub_f32 v{A9}, v{M9}, v{BM9}", w=V(A9), r=V(M9) + V(BM9))
        e.v(f"v_mul_f32 v{A1}, s{sC}, v{A1}", w=V(A1), r=V(A1)); e.v(f"v_mul_f32 v{A9}, s{sC}, v{A9}", w=V(A9), r=V(A9))
        e.t(f"v_exp_f32 v{A1}, v{A1}", w=V(A1), r=V(A1)); e.t(f"v_exp_f32 v{A9}, v{A9}", w=V(A9), r=V(A9))
        e.v(f"v_mov_b32 v{M_}, v{BM}", w=V(M_), r=V(BM)); e.v(f"v_mov_b32 v{M9}, v{BM9}", w=V(M9), r=V(BM9))
        e.v(f"v_mul_f32 v{MC}, s{sC}, v{BM}", w=V(MC), r=V(BM)); e.v(f"v_mul_f32 v{MC9}, s{sC}, v{BM9}", w=V(MC9), r=V(BM9))
        e.v(f"v_mul_f32 v{L_}, v{L_}, v{A1}", w=V(L_), r=V(L_) + V(A1)); e.v(f"v_mul_f32 v{L9}, v{L9}, v{A9}", w=V(L9), r=V(L9) + V(A9))
        for k in range(64): e.v(f"v_mul_f32 v{R_O+k}, v{R_O+k}, v{A1}", w=V(R_O+k), r=V(R_O+k) + V(A1))
        for k in range(32): e.v(f"v_mul_f32 v{R_O9+k}, v{R_O9+k}, v{A9}", w=V(R_O9+k), r=V(R_O9+k) + V(A9))
        e.nop(4)
        e.s(f"s_branch {name}_rb{j}")
    return e.text()
```

```python
from emit import *
import os
EXP = os.environ.get('K2EXP', '')
WOFL = os.environ.get('WOFL', '')
OLFL = os.environ.get('OLFL', '')
from k1 import load_ptrs, mk_srd, OPAD, QS, TS, XF
NR = int(os.environ.get('NR', '8'))
LDS2 = max(147456, 4*NR*4096)
ACC = 256
BB = 0
AF = 160
vAW = 200
vDW = 208
vL, vLO = 210, 211
T0 = 212
RB = 48
NV2 = 448
sW, sO, sOUT = 8, 12, 16
sWV, sBR, sRG, sNG, sWO, sLW = 28, 29, 30, 31, 34, 36
sB0, sB1, sB2, sT0 = 40, 41, 42, 43

PF = os.environ.get('K2PF', '')
G2 = 256 if PF else 240
def gen_k2(name):
    e = Em()
    e.label(name)
    e.s(f"s_cmp_ge_u32 s2, {G2}"); e.s(f"s_cbranch_scc1 {name}_end")
    load_ptrs(e)
    def vv(t, w, r=()): e.v(t, w=V(w), r=[x for a in r for x in V(a)])
    vv(f"v_and_b32 v{vL}, 63, v0", vL, [0])
    vv(f"v_lshrrev_b32 v{T0}, 6, v0", T0, [0])
    e.ins(f"v_readfirstlane_b32 s{sWV}, v{T0}", 'rdlane', w=S(sWV), r=V(T0))
    e.s("s_and_b32 s3, s2, 7"); e.s("s_lshr_b32 s4, s2, 3")
    e.s(f"s_lshr_b32 s{sBR}, s3, 2"); e.s("s_and_b32 s3, s3, 3"); e.s("s_mul_i32 s3, s3, 6")
    e.s("s_mul_i32 s5, s4, 205"); e.s("s_lshr_b32 s5, s5, 10")
    e.s(f"s_add_u32 s{sRG}, s3, s5"); e.s("s_mul_i32 s5, s5, 5"); e.s(f"s_sub_u32 s{sNG}, s4, s5")
    e.s(f"s_mul_i32 s3, s{sWV}, {1024*1280}", r=S(sWV)); e.s(f"s_lshl_b32 s4, s{sNG}, 8"); e.s(f"s_add_u32 s{sWO}, s3, s4")
    e.s(f"s_mul_i32 s{sLW}, s{sWV}, {NR*4096}")
    e.s(f"s_mul_i32 s3, s{sBR}, 72"); e.s(f"s_mul_i32 s4, s{sRG}, 3"); e.s("s_add_u32 s3, s3, s4"); e.s(f"s_mul_i32 s3, s3, {TS}" if OPAD else "s_lshl_b32 s3, s3, 18")
    e.s(f"s_mul_i32 s4, s{sWV}, {QS}" if OPAD else f"s_lshl_b32 s4, s{sWV}, 16"); e.s(f"s_add_u32 s{sB0}, s3, s4")
    e.s(f"s_add_u32 s{sB1}, s{sB0}, {TS}"); e.s(f"s_add_u32 s{sB2}, s{sB0}, {2*TS}")
    A, Bq, C_, D_, R4, CC, DH, LOWC, SUB, X1, X2 = [T0 + i for i in range(11)]
    vv(f"v_lshrrev_b32 v{A}, 4, v{vL}", A, [vL]); vv(f"v_and_b32 v{Bq}, 15, v{vL}", Bq, [vL])
    vv(f"v_lshrrev_b32 v{D_}, 5, v{vL}", D_, [vL])
    e.s("s_movk_i32 s3, 1280", w=S(3))
    vv(f"v_mul_lo_u32 v{X1}, v{A}, s3", X1, [A])
    for ee in range(2):
        vv(f"v_lshlrev_b32 v{C_}, 2, v{A}", C_, [A]); vv(f"v_xor_b32 v{C_}, v{C_}, v{Bq}", C_, [C_, Bq])
        if ee: vv(f"v_xor_b32 v{C_}, 2, v{C_}", C_, [C_])
        vv(f"v_lshl_add_u32 v{vDW+ee}, v{C_}, 4, v{X1}", vDW+ee, [C_, X1])
    vv(f"v_lshlrev_b32 v{vLO}, 4, v{vL}", vLO, [vL])
    e.wait(lg0=True)
    e.s(f"s_cmp_eq_u32 s{sBR}, 0")
    mk_srd(e, sW, 72, 82, 5242880); mk_srd(e, sO, 86, None, XF); mk_srd(e, sOUT, 84, None, 5898240)
    if PF:
        e.s("s_cmp_ge_u32 s2, 240"); e.s(f"s_cbranch_scc1 {name}_pf")
    cur = [0]
    def issue(ks):
        if ks >= 64: return
        sl = ks % NR; rel = ks - cur[0]
        for u in range(4):
            e.s(f"s_add_u32 s{sT0}, s{sWO}, {(rel*16 + 4*u)*1280}", w=S(sT0))
            e.s(f"s_add_u32 m0, s{sLW}, {sl*4096 + u*1024}", w=[('m0', 0)])
            if 'nodma' not in EXP: e.dma(vDW + (u & 1), sW, sT0, 0, ('w', ks), WOFL)
        for rt, s_ in enumerate((sB0, sB1, sB2)):
            e.s(f"s_add_u32 s{sT0+1+rt}, s{s_}, {(rel//4)*4096}", w=S(sT0+1+rt))
            if 'nob' not in EXP: e.bload(BB + 12*sl + 4*rt, 4, vLO, sO, sT0+1+rt, 1024*(ks % 4), ('b', ks), OLFL)
    for ks in range(NR - 1): issue(ks)
    for k in range(192): e.v(f"v_accvgpr_write_b32 {vr(ACC+k)}, 0", w=V(ACC+k))
    vv(f"v_lshrrev_b32 v{R4}, 2, v{Bq}", R4, [Bq]); vv(f"v_and_b32 v{CC}, 3, v{vL}", CC, [vL]); vv(f"v_and_b32 v{DH}, 1, v{A}", DH, [A])
    vv(f"v_and_b32 v{LOWC}, 1, v{CC}", LOWC, [CC]); vv(f"v_lshl_add_u32 v{LOWC}, v{DH}, 1, v{LOWC}", LOWC, [DH, LOWC])
    vv(f"v_lshrrev_b32 v{SUB}, 1, v{CC}", SUB, [CC]); vv(f"v_lshlrev_b32 v{SUB}, 3, v{SUB}", SUB, [SUB])
    vv(f"v_add_u32 v{SUB}, s{sLW}, v{SUB}", SUB, [SUB])
    for t in range(4):
        vv(f"v_xor_b32 v{X1}, {t}, v{R4}", X1, [R4])
        for ee in range(2):
            d = vAW + 2*t + ee
            vv(f"v_xor_b32 v{X2}, {2*ee}, v{LOWC}", X2, [LOWC])
            vv(f"v_lshl_add_u32 v{X2}, v{X1}, 2, v{X2}", X2, [X1, X2])
            vv(f"v_lshl_add_u32 v{X2}, v{X2}, 4, v{SUB}", X2, [X2, SUB])
            vv(f"v_lshl_add_u32 v{X2}, v{R4}, 8, v{X2}", X2, [R4, X2])
            vv(f"v_lshl_add_u32 v{d}, v{D_}, 11, v{X2}", d, [D_, X2])
            if ee: vv(f"v_add_u32 v{d}, 1024, v{d}", d, [d])
    def ard(ks):
        if ks >= 64: return
        e.wait(vm=[('w', ks)])
        for t in range(4):
            for ee in range(2):
                e.dsr("ds_read_b64_tr_b16", AF + 16*(ks % 2) + 4*t + 2*ee, 2, vAW + 2*t + ee, (ks % NR)*4096, ('a', ks, t))
    ard(0)
    def body(k0):
        for ks in range(k0, k0 + 8):
            ard(ks + 1)
            issue(ks + NR - 1)
            e.wait(vm=[('b', ks)])
            for t in range(4):
                e.wait(lg=[('a', ks, t)])
                for rt in range(3):
                    d = ACC + 16*(rt*4 + t)
                    e.mfma32(d, AF + 16*(ks % 2) + 4*t, BB + 12*(ks % NR) + 4*rt, d)
    assert NR == 8
    e.s("s_mov_b32 s50, 7")
    e.label(f"{name}_loop")
    body(0)
    e.s(f"s_add_u32 s{sWO}, s{sWO}, {128*1280}")
    for s_ in (sB0, sB1, sB2): e.s(f"s_add_u32 s{s_}, s{s_}, 8192")
    e.s("s_sub_u32 s50, s50, 1"); e.s("s_cmp_lg_u32 s50, 0"); e.s(f"s_cbranch_scc1 {name}_loop")
    def sh(t): return (t[0], t[1] + 48) + tuple(t[2:])
    e.vm = [sh(t) for t in e.vm]; e.lg = [sh(t) for t in e.lg]
    cur[0] = 56
    body(56)
    e.wait(lg0=True, vm0=True); e.barrier(); e.nop(16)
    AD = T0
    for nt in range(4):
        e.s(f"s_cmp_eq_u32 s{sWV}, {nt}"); e.s(f"s_cbranch_scc1 {name}_sk{nt}")
        e.s(f"s_sub_u32 s3, s{sWV}, {nt+1}", w=S(3)); e.s("s_and_b32 s3, s3, 3", w=S(3))
        e.s(f"s_mul_i32 s3, s3, 12288", w=S(3)); e.s(f"s_add_u32 s3, s3, {nt*36864}", w=S(3))
        vv(f"v_add_u32 v{AD}, s3, v{vLO}", AD, [vLO])
        for rt in range(3):
            for q4 in range(4):
                e.dsw("ds_write_b128", AD, ACC + 16*(rt*4 + nt) + 4*q4, 4, rt*4096 + q4*1024)
        e.wait(lg0=True)
        e.label(f"{name}_sk{nt}")
        e.nop(2)
    e.wait(lg0=True); e.barrier()
    OWN = BB
    for nt in range(4):
        e.s(f"s_cmp_lg_u32 s{sWV}, {nt}"); e.s(f"s_cbranch_scc1 {name}_mv{nt}")
        for rt in range(3):
            for k in range(16): vv(f"v_accvgpr_read_b32 v{OWN+16*rt+k}, {vr(ACC+16*(rt*4+nt)+k)}", OWN+16*rt+k, [ACC+16*(rt*4+nt)+k])
        e.label(f"{name}_mv{nt}")
        e.nop(2)
    e.s(f"s_mul_i32 s3, s{sWV}, 36864", w=S(3))
    vv(f"v_add_u32 v{AD}, s3, v{vLO}", AD, [vLO])
    for sl in range(3):
        for rt in range(3):
            for q4 in range(4):
                e.dsr("ds_read_b128", RB + 48*sl + 16*rt + 4*q4, 4, AD, sl*12288 + rt*4096 + q4*1024, ('r', sl))
        e.wait(lg0=True)
    for k in range(48):
        vv(f"v_add_f32 v{OWN+k}, v{OWN+k}, v{RB+k}", OWN+k, [OWN+k, RB+k])
        vv(f"v_add_f32 v{RB+48+k}, v{RB+48+k}, v{RB+96+k}", RB+48+k, [RB+48+k, RB+96+k])
    for k in range(48): vv(f"v_add_f32 v{OWN+k}, v{OWN+k}, v{RB+48+k}", OWN+k, [OWN+k, RB+48+k])
    for k in range(24): vv(f"v_cvt_pk_bf16_f32 v{OWN+k}, v{OWN+2*k}, v{OWN+2*k+1}", OWN+k, [OWN+2*k, OWN+2*k+1])
    Q32, ROW, COL = T0+1, T0+2, T0+3
    vv(f"v_and_b32 v{Q32}, 31, v{vL}", Q32, [vL])
    vv(f"v_lshrrev_b32 v{COL}, 5, v{vL}", COL, [vL]); vv(f"v_lshlrev_b32 v{COL}, 4, v{COL}", COL, [COL])
    e.s(f"s_mul_i32 s3, s{sBR}, 1280", w=S(3)); e.s(f"s_lshl_b32 s4, s{sNG}, 8", w=S(4)); e.s("s_add_u32 s3, s3, s4", w=S(3))
    e.s(f"s_lshl_b32 s4, s{sWV}, 6", w=S(4)); e.s("s_add_u32 s3, s3, s4", w=S(3))
    vv(f"v_add_u32 v{COL}, s3, v{COL}", COL, [COL])
    TL = T0 + 4
    vv(f"v_lshrrev_b32 v{TL}, 4, v{Q32}", TL, [Q32]); vv(f"v_mul_u32_u24 v{TL}, 144, v{TL}", TL, [TL])
    vv(f"v_and_b32 v{ROW}, 15, v{Q32}", ROW, [Q32]); vv(f"v_add_u32 v{TL}, v{TL}, v{ROW}", TL, [TL, ROW])
    e.s("s_movk_i32 s7, 2560", w=S(7))
    for rt in range(3):
        e.s(f"s_mul_i32 s3, s{sRG}, 3", w=S(3)); e.s(f"s_add_u32 s3, s3, {rt}", w=S(3))
        e.s("s_lshr_b32 s4, s3, 2", w=S(4)); e.s("s_mul_i32 s4, s4, 144", w=S(4)); e.s("s_and_b32 s5, s3, 3", w=S(5))
        e.s("s_lshl_b32 s5, s5, 5", w=S(5)); e.s("s_add_u32 s4, s4, s5", w=S(4))
        e.s("s_sub_u32 s5, s3, 64", w=S(5)); e.s("s_mul_i32 s5, s5, 288", w=S(5)); e.s("s_add_u32 s5, s5, 128", w=S(5))
        e.s("s_cmp_lt_u32 s3, 64"); e.s("s_cselect_b32 s4, s4, s5", w=S(4)); e.s("s_cselect_b64 vcc, -1, 0", w=[('vcc', 0)])
        e.nop(1)
        e.v(f"v_cndmask_b32 v{ROW}, v{TL}, v{Q32}, vcc", w=V(ROW), r=V(TL) + V(Q32))
        vv(f"v_add_u32 v{ROW}, s4, v{ROW}", ROW, [ROW])
        vv(f"v_mul_lo_u32 v{ROW}, v{ROW}, s7", ROW, [ROW])
        vv(f"v_add_u32 v{T0+5+rt}, v{ROW}, v{COL}", T0+5+rt, [ROW, COL])
        for s1 in range(2): e.bstore(OWN + 8*rt + 4*s1, 4, T0+5+rt, sOUT, "0", 32*s1)
    e.label(f"{name}_end")
    e.raw("    s_endpgm")
    if PF:
        st, wt = [int(x) for x in PF.split(',')]
        R = lambda t: e.raw("    " + t)
        e.label(f"{name}_pf")
        R(f"v_lshlrev_b32 v1, 7, v{vL}")
        R(f"s_mul_i32 s3, s{sNG}, {9 << 18}"); R(f"s_add_u32 s{sB0}, s{sB0}, s3"); R(f"s_sub_u32 s{sB0}, s{sB0}, {(18 << 18) - st*8192}")
        R(f"s_mul_i32 s3, s{sNG}, {81920 - 256}"); R(f"s_add_u32 s{sWO}, s{sWO}, s3"); R(f"s_add_u32 s{sWO}, s{sWO}, {st*128*1280}")
        R(f"s_mov_b32 s50, {8 - st}")
        e.label(f"{name}_pfl")
        for i in range(10):
            R(f"s_add_u32 s3, s{sWO}, {i*8192}")
            R(f"buffer_load_dword v{2+i}, v1, s[{sW}:{sW+3}], s3 offen")
            if i < 9:
                R(f"s_add_u32 s4, s{sB0}, {i << 18}")
                R(f"buffer_load_dword v{12+i}, v1, s[{sO}:{sO+3}], s4 offen")
        R(f"s_waitcnt vmcnt({wt})")
        R(f"s_add_u32 s{sWO}, s{sWO}, {128*1280}"); R(f"s_add_u32 s{sB0}, s{sB0}, 8192")
        R("s_sub_u32 s50, s50, 1"); R("s_cmp_lg_u32 s50, 0"); R(f"s_cbranch_scc1 {name}_pfl")
        R("s_waitcnt vmcnt(0)")
        R("s_endpgm")
    return e.text()
```

```python
from emit import *
from emit import EXP1
import math, struct
def f2u(f): return struct.unpack('<I', struct.pack('<f', f))[0]
CSC = math.log2(math.e) / math.sqrt(128.0)
THR = 8.0 / CSC

SLOT = 16384
KVB = 16384
Q9B = 0
MLB = 4096
LDS1 = 81920
R_O, R_SA, R_SB, R_Q, R_F, R_O9 = 0, 64, 96, 128, 160, 192
R_QA = 160
R_TA = 224
S9A, S9B, P9 = 224, 228, 232
M9, L9, M_, L_, MC, MC9 = 234, 235, 236, 237, 238, 239
T0 = 240
vKA, vVA, vK9, vV9, vDK, vDV, vL, vT2 = 248, 249, 250, 251, 252, 253, 254, 255
vAW, vDW, vX = 96, 104, 106
sK, sV, sW, sO = 12, 16, 20, 24
sWV, sBR, sB, sH, sXO, sWO, sKO, sLW, sC, sTH = 28, 29, 30, 31, 32, 34, 35, 36, 37, 38
sT0, sT1, sT2 = 40, 41, 42
sKX = 44
import os
KVFL = os.environ.get("KVFL", " nt")
WQFL = os.environ.get("WQFL", "")
XFL = os.environ.get("XFL", "")
OSFL = os.environ.get("OSFL", "")
WOPF = os.environ.get("WOPF", "1")
XD = os.environ.get('XD', '') == '1'
OPAD = int(os.environ.get('OPAD', '0'))
QS = 65536 + OPAD
TS = 4*QS
XF = (144*TS + 65535) // 65536 * 65536
WSZ = XF + 6553600
def load_ptrs(e):
    e.s("s_load_dwordx16 s[64:79], s[0:1], 0", w=S(64, 16))
    e.s("s_load_dwordx4 s[80:83], s[0:1], 64", w=S(80, 4))
    e.s("s_load_dwordx2 s[84:85], s[0:1], 80", w=S(84, 2))
    e.s("s_load_dwordx2 s[86:87], s[0:1], 96", w=S(86, 2))

def mk_srd(e, d, a, b, size):
    if b is None:
        e.s(f"s_mov_b32 s{d}, s{a}"); e.s(f"s_and_b32 s{d+1}, s{a+1}, 0xffff")
    else:
        e.s(f"s_cselect_b32 s{d}, s{a}, s{b}"); e.s(f"s_cselect_b32 s{d+1}, s{a+1}, s{b+1}")
    e.s(f"s_mov_b32 s{d+2}, {size}"); e.s(f"s_mov_b32 s{d+3}, 0x00020000")


def gen_k1(name):
    e = Em(); e.abl = True
    e.label(name)
    e.s("s_cmp_ge_u32 s2, 1024"); e.s(f"s_cbranch_scc1 {name}_end")
    load_ptrs(e)
    PR = os.environ.get('K1PRIO', '')
    if PR:
        lo, hi = PR.split('-')
        e.s(f"s_cmp_lt_u32 s2, {lo}"); e.s(f"s_cbranch_scc1 {name}_np")
        e.s(f"s_cmp_ge_u32 s2, {hi}"); e.s(f"s_cbranch_scc1 {name}_np")
        e.s("s_setprio 2")
        e.label(f"{name}_np")
    if 'stamp' in EXP1:
        e.s("s_memtime s[90:91]"); e.s("s_memrealtime s[92:93]"); e.s("s_load_dwordx2 s[88:89], s[0:1], 88")
    def vv(t, w, r=()): e.v(t, w=V(w), r=[x for a in r for x in V(a)])
    vv(f"v_and_b32 v{vL}, 63, v0", vL, [0])
    vv(f"v_lshrrev_b32 v{T0}, 6, v0", T0, [0])
    e.ins(f"v_readfirstlane_b32 s{sWV}, v{T0}", 'rdlane', w=S(sWV), r=V(T0))
    e.s("s_and_b32 s3, s2, 7"); e.s("s_lshr_b32 s4, s2, 3")
    e.s(f"s_lshr_b32 s{sBR}, s3, 2")
    e.s("s_and_b32 s3, s3, 3"); e.s("s_lshl_b32 s3, s3, 3"); e.s("s_and_b32 s5, s4, 7")
    e.s(f"s_add_u32 s{sH}, s3, s5"); e.s(f"s_lshr_b32 s{sB}, s4, 3")
    e.s(f"s_mov_b32 s{sC}, {f2u(CSC)}"); e.s(f"s_mov_b32 s{sTH}, {f2u(THR)}")
    if XD:
        e.s(f"s_mul_i32 s3, s{sB}, 184320"); e.s(f"s_add_u32 s{sXO+1}, s3, {4*40960}")
        e.s(f"s_mul_i32 s4, s{sWV}, 40960", r=S(sWV)); e.s(f"s_add_u32 s{sXO}, s3, s4")
    else:
        e.s(f"s_lshl_b32 s3, s{sBR}, 4"); e.s(f"s_add_u32 s3, s3, s{sB}"); e.s("s_mul_i32 s3, s3, 204800"); e.s(f"s_add_u32 s{sXO+1}, s3, {XF + 4*40960}")
        e.s(f"s_mul_i32 s4, s{sWV}, 40960", r=S(sWV)); e.s("s_add_u32 s3, s3, s4"); e.s(f"s_add_u32 s{sXO}, s3, {XF}")
    e.s(f"s_lshl_b32 s{sLW}, s{sWV}, 12")
    e.s(f"s_lshl_b32 s3, s{sWV}, 16"); e.s(f"s_lshl_b32 s4, s{sH}, 8"); e.s(f"s_add_u32 s{sWO}, s3, s4")
    e.s(f"s_lshl_b32 s3, s{sB}, 5"); e.s(f"s_add_u32 s3, s3, s{sH}"); e.s("s_lshl_b32 s3, s3, 17")
    e.s(f"s_add_u32 s{sKO}, s3, s{sLW}")
    e.s(f"s_lshl_b32 s39, s{sWV}, 11")
    A, Bq, C_, D_, E_, F_, X1, X2 = [T0 + i for i in range(8)]
    vv(f"v_lshrrev_b32 v{A}, 4, v{vL}", A, [vL])
    vv(f"v_and_b32 v{Bq}, 15, v{vL}", Bq, [vL])
    vv(f"v_xor_b32 v{C_}, v{A}, v{Bq}", C_, [A, Bq])
    vv(f"v_lshlrev_b32 v{C_}, 4, v{C_}", C_, [C_])
    vv(f"v_lshl_add_u32 v{vDK}, v{A}, 8, v{C_}", vDK, [A, C_])
    vv(f"v_lshl_add_u32 v{vK9}, v{Bq}, 8, v{C_}", vK9, [Bq, C_])
    vv(f"v_lshlrev_b32 v{C_}, 2, v{A}", C_, [A])
    vv(f"v_xor_b32 v{C_}, v{C_}, v{Bq}", C_, [C_, Bq])
    vv(f"v_lshlrev_b32 v{C_}, 4, v{C_}", C_, [C_])
    vv(f"v_lshl_add_u32 v{vDV}, v{A}, 8, v{C_}", vDV, [A, C_])
    vv(f"v_lshl_add_u32 v{vDW}, v{A}, 13, v{C_}", vDW, [A, C_])
    vv(f"v_xor_b32 v{vDW+1}, 32, v{vDW}", vDW+1, [vDW])
    vv(f"v_and_b32 v{C_}, 31, v{vL}", C_, [vL])
    vv(f"v_lshrrev_b32 v{D_}, 5, v{vL}", D_, [vL])
    if XD:
        e.s("s_movk_i32 s3, 1280", w=S(3))
        vv(f"v_mul_lo_u32 v{vX}, v{C_}, s3", vX, [C_]); vv(f"v_lshl_add_u32 v{vX}, v{D_}, 5, v{vX}", vX, [D_, vX])
        vv(f"v_mul_lo_u32 v109, v{Bq}, s3", 109, [Bq]); vv(f"v_lshl_add_u32 v109, v{D_}, 5, v109", 109, [D_, 109])
        vv(f"v_and_b32 v113, 16, v{vL}", 113, [vL]); vv(f"v_add_u32 v109, v109, v113", 109, [109, 113])
    else: vv(f"v_lshlrev_b32 v{vX}, 4, v{vL}", vX, [vL])
    e.wait(lg0=True)
    e.s(f"s_cmp_eq_u32 s{sBR}, 0")
    mk_srd(e, sK, 66, 76, 67108864); mk_srd(e, sV, 68, 78, 67108864)
    mk_srd(e, sW, 70, 80, 5242880)
    if XD: mk_srd(e, 8, 64, 74, 2949120)
    mk_srd(e, sO, 86, None, WSZ)
    seq = [('K', 0)]
    for j in range(7): seq += [('K', j + 1), ('V', j)]
    seq += [('V', 7)]
    def slot_of(n): return ((n + 3) % 4) * SLOT
    DT = [107, 108]
    def issue_kv(n, us=(0, 1, 2, 3), tmp=None):
        if n > 15: return
        kind, j = seq[n]
        tmp = tmp or DT
        e.s(f"s_add_u32 s{sT0}, s{sKO}, {j*16384}", w=S(sT0))
        e.s(f"s_add_u32 m0, s{sLW}, {KVB + slot_of(n)}", w=[('m0', 0)])
        for u in us:
            x = (64*u) if kind == 'K' else (32*(u & 1))
            base = vDK if kind == 'K' else vDV
            a = base
            if x:
                a = tmp[u & 1]
                vv(f"v_xor_b32 v{a}, {x}, v{base}", a, [base])
            e.dma(a, sK if kind == 'K' else sV, sT0, u*1024, ('kv', n), KVFL)
    RING = int(os.environ.get('RING', '8'))
    E1, E2 = [int(x) for x in os.environ.get('RE', '2,5').split(',')]
    def wsub(c): return (16384 + (8 - RING) * 8192 + ((c - 12 - (8 - RING)) % RING) * 8192) % 65536
    QD = {8: 6, 6: 5, 4: 3}[RING]
    KVS = {8: {14: 1, 16: 2, 18: 3}, 6: {E1: 1, 16: 2, 18: 3}, 4: {E1: 1, E2: 2, 18: 3}}[RING]
    XBUF = [0, 12, 24, 36, 48, 116, 128]
    R_TO = 144
    def issue_w(c):
        if c > 19: return
        for u in range(2):
            e.s(f"s_add_u32 s{sT0}, s{sWO}, {c*262144 + u*32768}", w=S(sT0))
            e.s(f"s_add_u32 m0, s39, {wsub(c) + u*1024}", w=[('m0', 0)])
            if 'nowd' not in EXP1: e.dma(vDW + u, sW, sT0, 0, ('w', c), WQFL)
        if XD:
            b0 = XBUF[c % 7]
            for s in range(2): e.bload(b0 + 4*s, 4, vX, 8, sXO, 64*c + 16*s, ('w', c), XFL)
            e.bload(b0 + 8, 4, 109, 8, sXO + 1, 64*c, ('w', c), XFL)
            return
        e.s(f"s_add_u32 s{sT1}, s{sXO}, {c*2048}", w=S(sT1))
        e.s(f"s_add_u32 s{sT2}, s{sXO+1}, {c*1024}", w=S(sT2))
        b0 = XBUF[c % 7]
        for s in range(2): e.bload(b0 + 4*s, 4, vX, sO, sT1, 1024*s, ('w', c), XFL)
        e.bload(b0 + 8, 4, vX, sO, sT2, 0, ('w', c), XFL)
    for c in range(QD): issue_w(c)
    issue_kv(0)
    if os.environ.get('K1TOUCH', '0') == '1':
        e.s(f"s_add_u32 m0, s{sLW}, {KVB + 3*SLOT}", w=[('m0', 0)])
        e.s(f"s_and_b32 s3, s{sH}, 7", w=S(3)); e.s("s_mul_i32 s3, s3, 25600", w=S(3)); e.s(f"s_mul_i32 s4, s{sWV}, 6400", w=S(4))
        e.s("s_add_u32 s3, s3, s4", w=S(3)); e.s(f"s_add_u32 s3, s3, s{sXO+1}", w=S(3)); e.s(f"s_sub_u32 s3, s3, {4*40960}", w=S(3))
        e.s("s_add_u32 s4, s3, 3072", w=S(4))
        for k in range(3): e.dma(vX, sO, 3, 1024*k, 'touch')
        for k in range(4): e.dma(vX, sO, 4, 1024*k, 'touch')
        e.s(f"s_and_b32 s3, s{sB}, 7", w=S(3)); e.s("s_mul_i32 s3, s3, 80", w=S(3)); e.s(f"s_mul_i32 s4, s{sWV}, 20", w=S(4))
        e.s("s_add_u32 s3, s3, s4", w=S(3)); e.s("s_lshl_b32 s3, s3, 13", w=S(3)); e.s(f"s_lshl_b32 s4, s{sH}, 8", w=S(4)); e.s("s_add_u32 s3, s3, s4", w=S(3))
        for k in range(5):
            e.dma(vDW, sW, 3, 0, 'touch')
            if k < 4: e.s("s_add_u32 s3, s3, 32768", w=S(3))
    R4, CC, DH, LOWC, SUB = E_, F_, 110, 111, 112
    vv(f"v_lshrrev_b32 v{R4}, 2, v{Bq}", R4, [Bq])
    vv(f"v_and_b32 v{CC}, 3, v{vL}", CC, [vL])
    vv(f"v_and_b32 v{DH}, 1, v{A}", DH, [A])
    vv(f"v_and_b32 v{LOWC}, 1, v{CC}", LOWC, [CC])
    vv(f"v_lshl_add_u32 v{LOWC}, v{DH}, 1, v{LOWC}", LOWC, [DH, LOWC])
    vv(f"v_lshrrev_b32 v{SUB}, 1, v{CC}", SUB, [CC])
    vv(f"v_lshlrev_b32 v{SUB}, 3, v{SUB}", SUB, [SUB])
    for u in range(4):
        e.s(f"s_add_u32 s3, s{sWV}, {u}", w=S(3)); e.s("s_and_b32 s3, s3, 3", w=S(3))
        e.s(f"s_lshl_b32 s{sKX+2*u}, s3, 6", w=S(sKX+2*u)); e.s(f"s_xor_b32 s{sKX+2*u+1}, s{sKX+2*u}, 32", w=S(sKX+2*u+1))
        vv(f"v_xor_b32 v{X1}, s3, v{R4}", X1, [R4])
        for ee in range(2):
            d = vAW + 2*u + ee
            vv(f"v_xor_b32 v{X2}, {2*ee}, v{LOWC}", X2, [LOWC])
            vv(f"v_lshl_add_u32 v{X2}, v{X1}, 2, v{X2}", X2, [X1, X2])
            vv(f"v_lshl_add_u32 v{X2}, v{X2}, 4, v{SUB}", X2, [X2, SUB])
            vv(f"v_lshl_add_u32 v{X2}, v{R4}, 8, v{X2}", X2, [R4, X2])
            vv(f"v_lshl_add_u32 v{d}, v{D_}, 12, v{X2}", d, [D_, X2])
            if ee: vv(f"v_add_u32 v{d}, 1024, v{d}", d, [d])
    vv(f"v_lshlrev_b32 v{X2}, 1, v{D_}", X2, [D_])
    vv(f"v_xor_b32 v{X2}, v{X2}, v{LOWC}", X2, [X2, LOWC])
    vv(f"v_lshl_add_u32 v{X2}, v{R4}, 2, v{X2}", X2, [R4, X2])
    vv(f"v_lshl_add_u32 v{X2}, v{X2}, 4, v{SUB}", X2, [X2, SUB])
    vv(f"v_lshl_add_u32 v{X2}, v{R4}, 8, v{X2}", X2, [R4, X2])
    vv(f"v_lshl_add_u32 v{X2}, v{D_}, 10, v{X2}", X2, [D_, X2])
    vv(f"v_add_u32 v{vVA}, {KVB}, v{X2}", vVA, [X2])
    vv(f"v_lshrrev_b32 v{X1}, 1, v{CC}", X1, [CC])
    vv(f"v_lshl_or_b32 v{X1}, v{R4}, 2, v{X1}", X1, [R4, X1])
    vv(f"v_lshlrev_b32 v{X2}, 1, v{DH}", X2, [DH])
    vv(f"v_xor_b32 v{X1}, v{X1}, v{X2}", X1, [X1, X2])
    vv(f"v_and_b32 v{X2}, 1, v{CC}", X2, [CC])
    vv(f"v_lshlrev_b32 v{X2}, 3, v{X2}", X2, [X2])
    vv(f"v_lshl_add_u32 v{X1}, v{X1}, 4, v{X2}", X1, [X1, X2])
    vv(f"v_lshl_add_u32 v{X1}, v{R4}, 8, v{X1}", X1, [R4, X1])
    vv(f"v_lshl_add_u32 v{X1}, v{A}, 10, v{X1}", X1, [A, X1])
    e.s(f"s_add_u32 s43, s{sLW}, {KVB}", w=S(43))
    vv(f"v_add_u32 v{vV9}, s43, v{X1}", vV9, [X1])
    e.s(f"s_lshl_b32 s3, s{sWV}, 2", w=S(3))
    vv(f"v_add_u32 v{X1}, s3, v{D_}", X1, [D_])
    vv(f"v_xor_b32 v{X1}, v{X1}, v{Bq}", X1, [X1, Bq])
    vv(f"v_lshlrev_b32 v{X1}, 4, v{X1}", X1, [X1])
    vv(f"v_lshl_add_u32 v{vT2}, v{Bq}, 8, v{X1}", vT2, [Bq, X1])
    vv(f"v_xor_b32 v{X1}, v{D_}, v{Bq}", X1, [D_, Bq])
    vv(f"v_lshlrev_b32 v{X1}, 4, v{X1}", X1, [X1])
    vv(f"v_lshl_add_u32 v{X1}, v{C_}, 8, v{X1}", X1, [C_, X1])
    vv(f"v_add_u32 v{vKA}, {KVB}, v{X1}", vKA, [X1])
    AFB = 64
    def qsync(c):
        if c > 19: return
        e.wait(vm=[('w', c)])
        e.barrier()
    def qrd(k):
        if k >= 40: return
        c, s = divmod(k, 2)
        for u in range(4):
            for ee in range(2):
                e.dsr("ds_read_b64_tr_b16", AFB + 16*(k % 2) + 4*u + 2*ee, 2, vAW + 2*u + ee, wsub(c) + 2048*s, ('a', k, u))
    QP = os.environ.get("K1QPRIO", "0")
    if QP != '0': e.s(f's_setprio {QP}')
    KVT = [int(x) for x in os.environ.get('KVT', '').split(',') if x]
    KVTF = os.environ.get('KVTF', ' nt')
    if KVT:
        vv(f"v_lshlrev_b32 v109, 7, v{vL}", 109, [vL])
        e.s(f"s_add_u32 s52, s{sKO}, s{sLW}", w=S(52))
    qsync(0); qrd(0); qrd(1)
    for k in range(40):
        c, s = divmod(k, 2)
        xb = XBUF[c % 7]
        for u in range(4):
            e.wait(lg=[('a', k, u)])
            a = AFB + 16*(k % 2) + 4*u
            e.mfma32(R_QA + 16*u, a, xb + 4*s, None if k == 0 else R_QA + 16*u)
            if u == 0:
                ta = R_TA if s == 0 else R_TO
                e.mfma32(ta, a, xb + 8, None if k < 2 else ta)
            if u == 1 and s == 0:
                qsync(c + 1)
                if c + 1 > 19: e.barrier()
                for t in range(8):
                    if KVT and KVT[t] == c:
                        assert c <= 13
                        e.s(f"s_add_u32 s{sT0}, s52, {(t >> 1)*32768}", w=S(sT0))
                        e.bload(113, 1, 109, sV if t & 1 else sK, sT0, 0, 'kvt', KVTF)
                issue_w(c + QD)
                if c in KVS: issue_kv(KVS[c])
        qrd(k + 2)
    if 'stamp' in EXP1: e.s('s_memrealtime s[98:99]'); e.wait(lg0=True)
    TT = 64
    if QP != '0': e.s('s_setprio 0')
    for k in range(16): e.v(f"v_mov_b32 v{TT+k}, v{R_TA+k}", w=V(TT+k), r=V(R_TA+k))
    for k in range(16): e.ins(f"v_permlane16_swap_b32 v{R_TO+k}, v{TT+k}", 'perm', w=V(R_TO+k) + V(TT+k), r=V(R_TO+k) + V(TT+k))
    for k in range(16): e.v(f"v_add_f32 v{R_TA+k}, v{R_TA+k}, v{TT+k}", w=V(R_TA+k), r=V(R_TA+k) + V(TT+k))
    for k in range(8):
        e.v(f"v_cvt_pk_bf16_f32 v{R_SB+k}, v{R_TA+2*k}, v{R_TA+2*k+1}", w=V(R_SB+k), r=V(R_TA+2*k, 2))
    e.v(f"v_xor_b32 v{T0}, 32, v{vT2}", w=V(T0), r=V(vT2))
    e.wait(lg0=True); e.barrier()
    e.s("s_mov_b32 exec_lo, 0xffff"); e.s("s_mov_b32 exec_hi, 0xffff"); e.nop(1)
    e.dsw("ds_write_b128", vT2, R_SB, 4, Q9B); e.dsw("ds_write_b128", T0, R_SB + 4, 4, Q9B)
    e.s("s_mov_b64 exec, -1"); e.nop(1)
    for k in range(32):
        e.v(f"v_cvt_pk_bf16_f32 v{R_Q+k}, v{R_QA+2*k}, v{R_QA+2*k+1}", w=V(R_Q+k), r=V(R_QA+2*k, 2))
    NB = 8
    AT = [T0+6, T0+7]
    DT[:] = [T0+4, T0+5]
    reads = []
    mf = []
    atog = [0]
    def addr(base, x, sg=None):
        if sg is None and x == 0: return base
        a = AT[atog[0]]; atog[0] ^= 1
        if sg is not None: vv(f"v_xor_b32 v{a}, s{sg}, v{base}", a, [base])
        else: vv(f"v_xor_b32 v{a}, {x}, v{base}", a, [base])
        return a
    def add_K(n, j):
        sb = slot_of(n); RS = R_SA if j % 2 == 0 else R_SB; s9 = S9A if j % 2 == 0 else S9B
        for s in range(4):
            st = {}
            def rq(d, i, s=s, st=st):
                st['a'] = addr(vK9, 64*s); e.dsr("ds_read_b128", d, 4, st['a'], Q9B, ('r', i))
            def rk(d, i, s=s, st=st):
                a = AT[atog[0]]; atog[0] ^= 1
                vv(f"v_add_u32 v{a}, s43, v{st['a']}", a, [st['a']]); e.dsr("ds_read_b128", d, 4, a, sb, ('r', i))
            reads.append((n, rq)); reads.append((n, rk))
            mf.append(([len(reads)-2, len(reads)-1], lambda r, s=s: e.mfma16(s9, r[1], r[0], None if s == 0 else s9), 0.5))
        for s in range(8):
            st = {}
            def r0(d, i, s=s, st=st):
                st['a'] = addr(vKA, 0, sKX + s); e.dsr("ds_read_b128", d, 4, st['a'], sb, ('r', i))
            def r1(d, i, s=s, st=st): e.dsr("ds_read_b128", d, 4, st['a'], sb + 8192, ('r', i))
            for kt, rf in enumerate((r0, r1)):
                reads.append((n, rf))
                mf.append(([len(reads)-1], lambda r, s=s, kt=kt: e.mfma32(RS + 16*kt, r[0], R_Q + 4*s, None if s == 0 else RS + 16*kt), 1))
    def add_V(n, j):
        sb = slot_of(n); RS = R_SA if j % 2 == 0 else R_SB
        for t in range(0, 8, 2):
            def r9(d, i, t=t):
                for ee in range(2):
                    a = addr(vV9, 32*(t+ee)); e.dsr("ds_read_b64_tr_b16", d + 2*ee, 2, a, sb, ('r', i))
            reads.append((n, r9))
            def m9(r, t=t):
                for ee in range(2): e.mfma16k16(R_O9 + 4*(t+ee), r[0] + 2*ee, P9, None if j == 0 else R_O9 + 4*(t+ee))
            mf.append(([len(reads)-1], m9, 1))
        for s in range(4):
            for t in range(4):
                def rv(d, i, s=s, t=t):
                    a = addr(vVA, 64*t)
                    for ee in range(2): e.dsr("ds_read_b64_tr_b16", d + 2*ee, 2, a, sb + 4096*s + 2048*ee, ('r', i))
                reads.append((n, rv))
                mf.append(([len(reads)-1], lambda r, s=s, t=t: e.mfma32(R_O + 16*t, r[0], RS + 8*s, None if (j == 0 and s == 0) else R_O + 16*t), 1))
    marks = {}
    for n, (kind, j) in enumerate(seq):
        marks[(kind, j)] = len(mf)
        (add_K if kind == 'K' else add_V)(n, j)
    resc = []
    def softmax(j):
        RS = R_SA if j % 2 == 0 else R_SB; s9 = S9A if j % 2 == 0 else S9B
        BM, B2, BM9, B29 = T0, T0+1, T0+2, T0+3
        ops = []
        def o(f): ops.append(f)
        def V_(txt, w, r): o(lambda: e.v(txt, w=w, r=r))
        def P_(txt, a, b): o(lambda: e.ins(txt, 'perm', w=V(a) + V(b), r=V(a) + V(b)))
        V_(f"v_max3_f32 v{BM9}, v{s9}, v{s9+1}, v{s9+2}", V(BM9), V(s9, 3))
        V_(f"v_max_f32 v{BM9}, v{BM9}, v{s9+3}", V(BM9), V(BM9) + V(s9+3))
        V_(f"v_mov_b32 v{B29}, v{BM9}", V(B29), V(BM9))
        V_(f"v_max3_f32 v{BM}, v{RS}, v{RS+1}, v{RS+2}", V(BM), V(RS, 3))
        V_(f"v_max3_f32 v{B2}, v{RS+3}, v{RS+4}, v{RS+5}", V(B2), V(RS+3, 3))
        P_(f"v_permlane32_swap_b32 v{BM9}, v{B29}", BM9, B29)
        k = 6; tog = 0
        while k < 32:
            d = BM if tog == 0 else B2
            V_(f"v_max3_f32 v{d}, v{d}, v{RS+k}, v{RS+k+1}", V(d), V(d) + V(RS+k, 2)); k += 2; tog ^= 1
            if k == 8:
                V_(f"v_max_f32 v{BM9}, v{BM9}, v{B29}", V(BM9), V(BM9) + V(B29))
                V_(f"v_mov_b32 v{B29}, v{BM9}", V(B29), V(BM9))
            if k == 14: P_(f"v_permlane16_swap_b32 v{BM9}, v{B29}", BM9, B29)
            if k == 16: V_(f"v_max_f32 v{BM9}, v{BM9}, v{B29}", V(BM9), V(BM9) + V(B29))
            if k == 18 and j > 0: V_(f"v_sub_f32 v{B29}, v{BM9}, v{M9}", V(B29), V(BM9) + V(M9))
        V_(f"v_max_f32 v{BM}, v{BM}, v{B2}", V(BM), V(BM) + V(B2))
        V_(f"v_mov_b32 v{B2}, v{BM}", V(B2), V(BM))
        ops.append('gap')
        P_(f"v_permlane32_swap_b32 v{BM}, v{B2}", BM, B2)
        V_(f"v_max_f32 v{BM}, v{BM}, v{B2}", V(BM), V(BM) + V(B2))
        if j == 0:
            V_(f"v_mov_b32 v{M_}, v{BM}", V(M_), V(BM)); V_(f"v_mov_b32 v{M9}, v{BM9}", V(M9), V(BM9))
            V_(f"v_mul_f32 v{MC}, s{sC}, v{BM}", V(MC), V(BM)); V_(f"v_mul_f32 v{MC9}, s{sC}, v{BM9}", V(MC9), V(BM9))
        else:
            V_(f"v_sub_f32 v{B2}, v{BM}, v{M_}", V(B2), V(BM) + V(M_))
            V_(f"v_max_f32 v{B2}, v{B2}, v{B29}", V(B2), V(B2) + V(B29))
            V_(f"v_cmp_lt_f32 vcc, s{sTH}, v{B2}", [('vcc', 0)], V(B2))
            ops.append('gap')
            def br():
                e.nop(2); e.s(f"s_cbranch_vccnz {name}_rs{j}"); e.label(f"{name}_rb{j}"); resc.append(j)
            o(br)
        LA, LB = T0, T0+1
        def fma(r, mc): V_(f"v_fma_f32 v{r}, v{r}, s{sC}, -v{mc}", V(r), V(r) + V(mc))
        def ex(r): o(lambda: e.t(f"v_exp_f32 v{r}, v{r}", w=V(r), r=V(r)))
        for k in range(4): fma(s9 + k, MC9)
        for k in range(4): ex(s9 + k)
        need = {}
        for g8 in range(4):
            b0 = RS + 8*g8
            for k in range(8): fma(b0 + k, MC)
            if g8 == 0:
                V_(f"v_add_f32 v{B29}, v{s9}, v{s9+1}", V(B29), V(s9, 2))
                V_(f"v_add_f32 v{BM9}, v{s9+2}, v{s9+3}", V(BM9), V(s9+2, 2))
                V_(f"v_cvt_pk_bf16_f32 v{P9}, v{s9}, v{s9+1}", V(P9), V(s9, 2))
                V_(f"v_cvt_pk_bf16_f32 v{P9+1}, v{s9+2}, v{s9+3}", V(P9+1), V(s9+2, 2))
                if j == 0: V_(f"v_add_f32 v{L9}, v{B29}, v{BM9}", V(L9), V(B29) + V(BM9))
                else:
                    V_(f"v_add_f32 v{B29}, v{B29}, v{BM9}", V(B29), V(B29) + V(BM9))
                    V_(f"v_add_f32 v{L9}, v{L9}, v{B29}", V(L9), V(L9) + V(B29))
                need['t'] = len(ops)
            for k in range(8): ex(b0 + k)
            for k in range(4):
                a, b = b0 + 2*k, b0 + 2*k + 1
                if g8 == 0 and k == 0:
                    if j == 0: V_(f"v_mov_b32 v{L_}, v{a}", V(L_), V(a))
                    else: V_(f"v_add_f32 v{L_}, v{L_}, v{a}", V(L_), V(L_) + V(a))
                    V_(f"v_mov_b32 v{LB}, v{b}", V(LB), V(b))
                else:
                    V_(f"v_add_f32 v{L_}, v{L_}, v{a}", V(L_), V(L_) + V(a)); V_(f"v_add_f32 v{LB}, v{LB}, v{b}", V(LB), V(LB) + V(b))
                V_(f"v_cvt_pk_bf16_f32 v{b0+k}, v{a}, v{b}", V(b0+k), V(a) + V(b))
            need[g8] = len(ops)
        V_(f"v_add_f32 v{L_}, v{L_}, v{LB}", V(L_), V(L_) + V(LB))
        return ops, need
    nm = len(mf)
    plan = [[] for _ in range(nm + 1)]
    for j in range(8):
        ops, need = softmax(j)
        ops = [x for x in ops]
        start = marks[('K', j)] + 21
        if j > 0: start = max(start, marks[('V', j-1)] + (21 if j < 7 else 20))
        v0 = marks[('V', j)]
        dl = [(need['t'], v0), (need[0], v0 + 4), (need[1], v0 + 8), (need[2], v0 + 12), (need[3], v0 + 16), (len(ops), v0 + 18)]
        done = 0
        import math as _m
        for sl in range(start, v0 + 19):
            req = 0
            for cnt, dline in dl:
                if dline >= sl and cnt > done:
                    tot = sum(mf[i-1][2] for i in range(sl, dline + 1))
                    req = max(req, int(_m.ceil((cnt - done) * mf[sl-1][2] / tot - 1e-9)))
            plan[sl] += ops[done:done + req]; done += req
        assert done == len(ops)
    synced = [-1]
    DELAY = int(os.environ.get('K1DELAY', '2'))
    def do_read(i):
        n, fn = reads[i]
        if n > synced[0]:
            e.wait(vm=[('kv', n)], lg0=True); e.barrier(); synced[0] = n
            if n >= 1: issue_kv(n + 3)
            if n == 4 and WOPF == "2":
                e.s("s_cmp_lt_u32 s2, 512")
                mk_srd(e, sW, 72, 82, 5242880)
                e.s("s_and_b32 s3, s2, 511"); e.s("s_mul_i32 s3, s3, 10240"); e.s(f"s_mul_i32 s4, s{sWV}, 2560"); e.s("s_add_u32 s3, s3, s4", w=S(3))
                e.s("s_mov_b32 m0, 8192", w=[('m0', 0)])
                vv(f"v_lshlrev_b32 v{DT[0]}, 4, v{vL}", DT[0], [vL])
                for k in range(3): e.dma(DT[0], sW, 3, 1024*k, 'pf')
        fn(R_F + 4*(i % NB), i)
    for i in range(NB): do_read(i)
    nxt = NB; free = 0; hold = 0
    for i in range(nm):
        for op in plan[i]:
            if op != 'gap': op()
        rd, fn, _ = mf[i]
        e.wait(lg=[('r', x) for x in rd])
        fn([R_F + 4*(x % NB) for x in rd])
        free += len(rd)
        while free > 0 and nxt < len(reads):
            if reads[nxt][0] > synced[0] and hold < DELAY:
                hold += 1; break
            hold = 0
            do_read(nxt); nxt += 1; free -= 1
    for op in plan[nm]:
        if op != 'gap': op()
    if 'stamp' in EXP1: e.s('s_memrealtime s[100:101]')
    e.wait(lg0=True); e.barrier()
    if WOPF == "1":
        e.s("s_cmp_ge_u32 s2, 512"); e.s(f"s_cbranch_scc1 {name}_nopf")
        e.s("s_cmp_lt_u32 s2, 256")
        mk_srd(e, sW, 72, 82, 5242880)
        e.s("s_and_b32 s3, s2, 255"); e.s("s_mul_i32 s3, s3, 20480"); e.s(f"s_mul_i32 s4, s{sWV}, 5120"); e.s("s_add_u32 s3, s3, s4", w=S(3))
        e.s("s_add_u32 s4, s3, 4096", w=S(4))
        e.v(f"v_lshlrev_b32 v{T0}, 4, v{vL}", w=V(T0), r=V(vL))
        for k in range(4): e.bload(R_Q + 4*k, 4, T0, sW, 3, 1024*k, 'pf')
        e.bload(R_Q + 16, 4, T0, sW, 4, 0, 'pf')
        e.label(f"{name}_nopf")
        e.nop(2)
    X1, X2, X3, X4 = T0, T0+1, T0+2, T0+3
    e.v(f"v_mov_b32 v{X1}, v{L9}", w=V(X1), r=V(L9))
    e.v(f"v_mov_b32 v{X2}, v{L_}", w=V(X2), r=V(L_))
    e.ins(f"v_permlane32_swap_b32 v{L9}, v{X1}", 'perm', w=V(L9) + V(X1), r=V(L9) + V(X1))
    e.ins(f"v_permlane32_swap_b32 v{L_}, v{X2}", 'perm', w=V(L_) + V(X2), r=V(L_) + V(X2))
    e.v(f"v_add_f32 v{L9}, v{L9}, v{X1}", w=V(L9), r=V(L9) + V(X1))
    e.v(f"v_add_f32 v{L_}, v{L_}, v{X2}", w=V(L_), r=V(L_) + V(X2))
    e.v(f"v_mov_b32 v{X1}, v{L9}", w=V(X1), r=V(L9))
    e.t(f"v_rcp_f32 v{L_}, v{L_}", w=V(L_), r=V(L_))
    e.ins(f"v_permlane16_swap_b32 v{L9}, v{X1}", 'perm', w=V(L9) + V(X1), r=V(L9) + V(X1))
    e.v(f"v_add_f32 v{L9}, v{L9}, v{X1}", w=V(L9), r=V(L9) + V(X1))
    q16, gg = X1, X2
    e.v(f"v_and_b32 v{q16}, 15, v{vL}", w=V(q16), r=V(vL))
    e.v(f"v_lshrrev_b32 v{gg}, 4, v{vL}", w=V(gg), r=V(vL))
    e.s(f"s_mul_i32 s3, s{sWV}, 8448", w=S(3)); e.s(f"s_add_u32 s3, s3, {KVB}", w=S(3)); e.s("s_movk_i32 s4, 528", w=S(4))
    e.v(f"v_mul_lo_u32 v{X3}, v{q16}, s4", w=V(X3), r=V(q16))
    e.v(f"v_lshl_add_u32 v{X4}, v{gg}, 4, v{X3}", w=V(X4), r=V(gg) + V(X3))
    e.v(f"v_add_u32 v{X4}, s3, v{X4}", w=V(X4), r=V(X4))
    for t9 in range(8): e.dsw("ds_write_b128", X4, R_O9 + 4*t9, 4, 64*t9)
    e.s(f"s_lshl_b32 s3, s{sWV}, 7", w=S(3)); e.s(f"s_add_u32 s3, s3, {MLB}", w=S(3))
    e.v(f"v_lshlrev_b32 v{X4}, 3, v{q16}", w=V(X4), r=V(q16))
    e.v(f"v_add_u32 v{(T0+5)}, s3, v{X4}", w=V((T0+5)), r=V(X4))
    e.v(f"v_mov_b32 v{M9}, v{MC9}", w=V(M9), r=V(MC9))
    e.dsw("ds_write_b64", (T0+5), M9, 2, 0)
    e.s(f"s_mul_i32 s3, s{sBR}, 72", w=S(3)); e.s(f"s_lshl_b32 s4, s{sB}, 2", w=S(4)); e.s("s_add_u32 s4, s4, s3", w=S(4))
    e.s(f"s_add_u32 s4, s4, s{sWV}", w=S(4)); e.s(f"s_mul_i32 s4, s4, {TS}" if OPAD else "s_lshl_b32 s4, s4, 18", w=S(4))
    e.s(f"s_lshl_b32 s5, s{sH}, 13", w=S(5));
    if OPAD:
        e.s(f"s_lshr_b32 s{sT0}, s{sH}, 3", w=S(sT0)); e.s(f"s_mul_i32 s{sT0}, s{sT0}, {OPAD}", w=S(sT0)); e.s(f"s_add_u32 s5, s5, s{sT0}", w=S(5))
    e.s(f"s_add_u32 s{sT0}, s4, s5", w=S(sT0))
    e.s(f"s_add_u32 s{sT1}, s{sT0}, 4096", w=S(sT1))
    e.s(f"s_lshr_b32 s4, s{sB}, 1", w=S(4)); e.s("s_add_u32 s4, s4, s3", w=S(4)); e.s("s_add_u32 s4, s4, 64", w=S(4))
    e.s(f"s_mul_i32 s4, s4, {TS}" if OPAD else "s_lshl_b32 s4, s4, 18", w=S(4)); e.s(f"s_add_u32 s{sT2}, s4, s5", w=S(sT2))
    e.v(f"v_lshlrev_b32 v{vT2}, 4, v{vL}", w=V(vT2), r=V(vL))
    for ks in range(8):
        b0 = R_O + 8*ks
        for k in range(8): e.v(f"v_mul_f32 v{b0+k}, v{b0+k}, v{L_}", w=V(b0+k), r=V(b0+k) + V(L_))
        for k in range(4): e.v(f"v_cvt_pk_bf16_f32 v{b0+k}, v{b0+2*k}, v{b0+2*k+1}", w=V(b0+k), r=V(b0+2*k, 2))
        e.bstore(b0, 4, vT2, sO, sT0 if ks < 4 else sT1, 1024*(ks % 4), fl=OSFL)
    e.wait(lg0=True); e.barrier()
    B0 = R_SA
    e.v(f"v_lshlrev_b32 v{X4}, 3, v{q16}", w=V(X4), r=V(q16))
    e.v(f"v_add_u32 v{X4}, {MLB}, v{X4}", w=V(X4), r=V(X4))
    for w_ in range(4): e.dsr("ds_read_b64", B0 + 2*w_, 2, X4, 128*w_, 'ml')
    e.s(f"s_lshl_b32 s3, s{sWV}, 7", w=S(3))
    e.v(f"v_lshl_add_u32 v{X3}, v{gg}, 5, v{X3}", w=V(X3), r=V(gg) + V(X3))
    e.v(f"v_add_u32 v{X3}, s3, v{X3}", w=V(X3), r=V(X3))
    for w_ in range(4):
        for hh in range(2): e.dsr("ds_read_b128", R_F + 8*w_ + 4*hh, 4, X3, KVB + 8448*w_ + 16*hh, 'o9')
    e.wait(lg=['ml'])
    MM, LL = B0 + 8, B0 + 9
    e.v(f"v_max3_f32 v{MM}, v{B0}, v{B0+2}, v{B0+4}", w=V(MM), r=V(B0, 6))
    e.v(f"v_max_f32 v{MM}, v{MM}, v{B0+6}", w=V(MM), r=V(MM) + V(B0+6))
    for w_ in range(4): e.v(f"v_sub_f32 v{B0+2*w_}, v{B0+2*w_}, v{MM}", w=V(B0+2*w_), r=V(B0+2*w_) + V(MM))
    for w_ in range(4): e.t(f"v_exp_f32 v{B0+2*w_}, v{B0+2*w_}", w=V(B0+2*w_), r=V(B0+2*w_))
    e.v(f"v_mul_f32 v{LL}, v{B0}, v{B0+1}", w=V(LL), r=V(B0, 2))
    for w_ in range(1, 4): e.v(f"v_fmac_f32 v{LL}, v{B0+2*w_}, v{B0+2*w_+1}", w=V(LL), r=V(LL) + V(B0+2*w_, 2))
    e.t(f"v_rcp_f32 v{LL}, v{LL}", w=V(LL), r=V(LL))
    for w_ in range(4): e.v(f"v_mul_f32 v{B0+2*w_}, v{B0+2*w_}, v{LL}", w=V(B0+2*w_), r=V(B0+2*w_) + V(LL))
    e.wait(lg0=True)
    for k in range(8):
        e.v(f"v_mul_f32 v{R_F+k}, v{R_F+k}, v{B0}", w=V(R_F+k), r=V(R_F+k) + V(B0))
        for w_ in range(1, 4):
            e.v(f"v_fmac_f32 v{R_F+k}, v{R_F+8*w_+k}, v{B0+2*w_}", w=V(R_F+k), r=V(R_F+k) + V(R_F+8*w_+k) + V(B0+2*w_))
    for k in range(4): e.v(f"v_cvt_pk_bf16_f32 v{R_F+k}, v{R_F+2*k}, v{R_F+2*k+1}", w=V(R_F+k), r=V(R_F+2*k, 2))
    e.s(f"s_and_b32 s3, s{sB}, 1", w=S(3)); e.s("s_lshl_b32 s3, s3, 8", w=S(3))
    e.s(f"s_lshl_b32 s4, s{sWV}, 11", w=S(4)); e.s("s_add_u32 s3, s3, s4", w=S(3))
    e.v(f"v_lshlrev_b32 v{X3}, 9, v{gg}", w=V(X3), r=V(gg))
    e.v(f"v_lshl_add_u32 v{X3}, v{q16}, 4, v{X3}", w=V(X3), r=V(q16) + V(X3))
    e.v(f"v_add_u32 v{X3}, s3, v{X3}", w=V(X3), r=V(X3))
    e.bstore(R_F, 4, X3, sO, sT2, 0, fl=OSFL)
    if 'stamp' in EXP1:
        e.s("s_memtime s[94:95]"); e.s("s_memrealtime s[96:97]"); e.s("s_waitcnt lgkmcnt(0)")
        e.s("s_mov_b32 s88, s86"); e.s("s_mov_b32 s89, s87"); e.s("s_sub_u32 s94, s94, s90")
        e.s("s_mov_b32 s90, 0x8000000"); e.s("s_mov_b32 s91, 0x20000")
        e.s("s_lshl_b32 s3, s2, 4"); e.s("s_add_u32 s3, s3, 0x4000000")
        e.s("s_getreg_b32 s4, hwreg(HW_REG_HW_ID)"); e.s("s_getreg_b32 s5, hwreg(HW_REG_XCC_ID)")
        e.s("s_lshl_b32 s5, s5, 28"); e.s("s_and_b32 s4, s4, 0xfffffff"); e.s("s_or_b32 s4, s4, s5")
        e.v("v_mov_b32 v0, s92", w=V(0)); e.v("v_mov_b32 v1, s96", w=V(1)); e.v("v_mov_b32 v2, s98", w=V(2)); e.v("v_mov_b32 v3, s100", w=V(3)); e.v("v_mov_b32 v4, s3", w=V(4))
        e.nop(4)
        e.raw("    buffer_store_dwordx4 v[0:3], v4, s[88:91], 0 offen")
    e.label(f"{name}_end")
    e.raw("    s_endpgm")
    for j in resc:
        e.label(f"{name}_rs{j}")
        e.nop(16)
        BM, BM9, A1, A9 = T0, T0+2, T0+1, T0+3
        e.v(f"v_max_f32 v{BM}, v{BM}, v{M_}", w=V(BM), r=V(BM) + V(M_))
        e.v(f"v_max_f32 v{BM9}, v{BM9}, v{M9}", w=V(BM9), r=V(BM9) + V(M9))
        e.v(f"v_sub_f32 v{A1}, v{M_}, v{BM}", w=V(A1), r=V(M_) + V(BM))
        e.v(f"v_sub_f32 v{A9}, v{M9}, v{BM9}", w=V(A9), r=V(M9) + V(BM9))
        e.v(f"v_mul_f32 v{A1}, s{sC}, v{A1}", w=V(A1), r=V(A1)); e.v(f"v_mul_f32 v{A9}, s{sC}, v{A9}", w=V(A9), r=V(A9))
        e.t(f"v_exp_f32 v{A1}, v{A1}", w=V(A1), r=V(A1)); e.t(f"v_exp_f32 v{A9}, v{A9}", w=V(A9), r=V(A9))
        e.v(f"v_mov_b32 v{M_}, v{BM}", w=V(M_), r=V(BM)); e.v(f"v_mov_b32 v{M9}, v{BM9}", w=V(M9), r=V(BM9))
        e.v(f"v_mul_f32 v{MC}, s{sC}, v{BM}", w=V(MC), r=V(BM)); e.v(f"v_mul_f32 v{MC9}, s{sC}, v{BM9}", w=V(MC9), r=V(BM9))
        e.v(f"v_mul_f32 v{L_}, v{L_}, v{A1}", w=V(L_), r=V(L_) + V(A1)); e.v(f"v_mul_f32 v{L9}, v{L9}, v{A9}", w=V(L9), r=V(L9) + V(A9))
        for k in range(64): e.v(f"v_mul_f32 v{R_O+k}, v{R_O+k}, v{A1}", w=V(R_O+k), r=V(R_O+k) + V(A1))
        for k in range(32): e.v(f"v_mul_f32 v{R_O9+k}, v{R_O9+k}, v{A9}", w=V(R_O9+k), r=V(R_O9+k) + V(A9))
        e.nop(4)
        e.s(f"s_branch {name}_rb{j}")
    return e.text()
```

```python
import sys
sys.path.insert(0, 'gen')
import k0, k1, k2
N = "concat_heads__gqa_block_cached__gqa_block_cached__near_ridge"
ref = open(f"cdna_kernels/{N}.s.ref").read().split("\n")
hdr = [l for l in ref if l.startswith(";") and "@launch" not in l and "Override" not in l and "grid=ceil" not in l]
def kd(name, nv, acc):
    return f""".p2align 6
.amdhsa_kernel {name}
  .amdhsa_next_free_vgpr {nv}
  .amdhsa_next_free_sgpr 102
  .amdhsa_accum_offset {acc}
  .amdhsa_group_segment_fixed_size 0
  .amdhsa_kernarg_size 104
  .amdhsa_user_sgpr_count 2
  .amdhsa_user_sgpr_kernarg_segment_ptr 1
  .amdhsa_system_sgpr_workgroup_id_x 1
.end_amdhsa_kernel
"""
K1 = N + "_kernel"; K2 = "oproj_kernel"; K0 = "xprep_kernel"
out = "\n".join(hdr) + "\n"
if not k1.XD: out += f"; @launch kernel={K0} grid=(400,1,1) block=(256,1,1) lds=0\n"
out += f"; @launch kernel={K1} grid=(1024,1,1) block=(256,1,1) lds={k1.LDS1}\n"
out += f"; @launch kernel={K2} grid=({k2.G2},1,1) block=(256,1,1) lds={k2.LDS2}\n"
out += '.amdgcn_target "amdgcn-amd-amdhsa--gfx950"\n.text\n'
for nm, g in ((K0, k0.gen_k0), (K1, k1.gen_k1), (K2, k2.gen_k2))[1 if k1.XD else 0:]:
    out += f".globl {nm}\n.p2align 8\n.type {nm},@function\n" + g(nm)
out += '.section .rodata,"a"\n' + ("" if k1.XD else kd(K0, 24, 24)) + kd(K1, 256, 256) + kd(K2, k2.NV2, 256)
dst = sys.argv[1] if len(sys.argv) > 1 else f"cdna_kernels/{N}.s"
open(dst, "w").write(out)
print("wrote", dst, len(out))
```

```python
from emit import *
from emit import EXP1
import math, struct
def f2u(f): return struct.unpack('<I', struct.pack('<f', f))[0]
CSC = math.log2(math.e) / math.sqrt(128.0)
THR = 8.0 / CSC

SLOT = 16384
KVB = 16384
Q9B = 0
MLB = 4096
LDS1 = 81920
R_O, R_SA, R_SB, R_Q, R_F, R_O9 = 0, 64, 96, 128, 160, 192
R_QA = 160
R_TA = 224
S9A, S9B, P9 = 224, 228, 232
M9, L9, M_, L_, MC, MC9 = 234, 235, 236, 237, 238, 239
T0 = 240
vKA, vVA, vK9, vV9, vDK, vDV, vL, vT2 = 248, 249, 250, 251, 252, 253, 254, 255
vAW, vDW, vX = 96, 104, 106
sK, sV, sW, sO = 12, 16, 20, 24
sWV, sBR, sB, sH, sXO, sWO, sKO, sLW, sC, sTH = 28, 29, 30, 31, 32, 34, 35, 36, 37, 38
sT0, sT1, sT2 = 40, 41, 42
sKX = 44
import os
KVFL = os.environ.get("KVFL", " nt")
WQFL = os.environ.get("WQFL", "")
XFL = os.environ.get("XFL", "")
OSFL = os.environ.get("OSFL", "")
WOPF = os.environ.get("WOPF", "1")
XD = os.environ.get('XD', '') == '1'
OPAD = int(os.environ.get('OPAD', '0'))
QS = 65536 + OPAD
TS = 4*QS
XF = (144*TS + 65535) // 65536 * 65536
WSZ = XF + 6553600
def load_ptrs(e):
    e.s("s_load_dwordx16 s[64:79], s[0:1], 0", w=S(64, 16))
    e.s("s_load_dwordx4 s[80:83], s[0:1], 64", w=S(80, 4))
    e.s("s_load_dwordx2 s[84:85], s[0:1], 80", w=S(84, 2))
    e.s("s_load_dwordx2 s[86:87], s[0:1], 96", w=S(86, 2))

def mk_srd(e, d, a, b, size):
    if b is None:
        e.s(f"s_mov_b32 s{d}, s{a}"); e.s(f"s_and_b32 s{d+1}, s{a+1}, 0xffff")
    else:
        e.s(f"s_cselect_b32 s{d}, s{a}, s{b}"); e.s(f"s_cselect_b32 s{d+1}, s{a+1}, s{b+1}")
    e.s(f"s_mov_b32 s{d+2}, {size}"); e.s(f"s_mov_b32 s{d+3}, 0x00020000")


def gen_k1(name):
    e = Em(); e.abl = True
    e.label(name)
    e.s("s_cmp_ge_u32 s2, 1024"); e.s(f"s_cbranch_scc1 {name}_end")
    load_ptrs(e)
    PR = os.environ.get('K1PRIO', '')
    if PR:
        lo, hi = PR.split('-')
        e.s(f"s_cmp_lt_u32 s2, {lo}"); e.s(f"s_cbranch_scc1 {name}_np")
        e.s(f"s_cmp_ge_u32 s2, {hi}"); e.s(f"s_cbranch_scc1 {name}_np")
        e.s("s_setprio 2")
        e.label(f"{name}_np")
    if 'stamp' in EXP1:
        e.s("s_memtime s[90:91]"); e.s("s_memrealtime s[92:93]"); e.s("s_load_dwordx2 s[88:89], s[0:1], 88")
    def vv(t, w, r=()): e.v(t, w=V(w), r=[x for a in r for x in V(a)])
    vv(f"v_and_b32 v{vL}, 63, v0", vL, [0])
    vv(f"v_lshrrev_b32 v{T0}, 6, v0", T0, [0])
    e.ins(f"v_readfirstlane_b32 s{sWV}, v{T0}", 'rdlane', w=S(sWV), r=V(T0))
    e.s("s_and_b32 s3, s2, 7"); e.s("s_lshr_b32 s4, s2, 3")
    e.s(f"s_lshr_b32 s{sBR}, s3, 2")
    e.s("s_and_b32 s3, s3, 3"); e.s("s_lshl_b32 s3, s3, 3"); e.s("s_and_b32 s5, s4, 7")
    e.s(f"s_add_u32 s{sH}, s3, s5"); e.s(f"s_lshr_b32 s{sB}, s4, 3")
    e.s(f"s_mov_b32 s{sC}, {f2u(CSC)}"); e.s(f"s_mov_b32 s{sTH}, {f2u(THR)}")
    if XD:
        e.s(f"s_mul_i32 s3, s{sB}, 184320"); e.s(f"s_add_u32 s{sXO+1}, s3, {4*40960}")
        e.s(f"s_mul_i32 s4, s{sWV}, 40960", r=S(sWV)); e.s(f"s_add_u32 s{sXO}, s3, s4")
    else:
        e.s(f"s_lshl_b32 s3, s{sBR}, 4"); e.s(f"s_add_u32 s3, s3, s{sB}"); e.s("s_mul_i32 s3, s3, 204800"); e.s(f"s_add_u32 s{sXO+1}, s3, {XF + 4*40960}")
        e.s(f"s_mul_i32 s4, s{sWV}, 40960", r=S(sWV)); e.s("s_add_u32 s3, s3, s4"); e.s(f"s_add_u32 s{sXO}, s3, {XF}")
    e.s(f"s_lshl_b32 s{sLW}, s{sWV}, 12")
    e.s(f"s_lshl_b32 s3, s{sWV}, 16"); e.s(f"s_lshl_b32 s4, s{sH}, 8"); e.s(f"s_add_u32 s{sWO}, s3, s4")
    e.s(f"s_lshl_b32 s3, s{sB}, 5"); e.s(f"s_add_u32 s3, s3, s{sH}"); e.s("s_lshl_b32 s3, s3, 17")
    e.s(f"s_add_u32 s{sKO}, s3, s{sLW}")
    e.s(f"s_lshl_b32 s39, s{sWV}, 11")
    A, Bq, C_, D_, E_, F_, X1, X2 = [T0 + i for i in range(8)]
    vv(f"v_lshrrev_b32 v{A}, 4, v{vL}", A, [vL])
    vv(f"v_and_b32 v{Bq}, 15, v{vL}", Bq, [vL])
    vv(f"v_xor_b32 v{C_}, v{A}, v{Bq}", C_, [A, Bq])
    vv(f"v_lshlrev_b32 v{C_}, 4, v{C_}", C_, [C_])
    vv(f"v_lshl_add_u32 v{vDK}, v{A}, 8, v{C_}", vDK, [A, C_])
    vv(f"v_lshl_add_u32 v{vK9}, v{Bq}, 8, v{C_}", vK9, [Bq, C_])
    vv(f"v_lshlrev_b32 v{C_}, 2, v{A}", C_, [A])
    vv(f"v_xor_b32 v{C_}, v{C_}, v{Bq}", C_, [C_, Bq])
    vv(f"v_lshlrev_b32 v{C_}, 4, v{C_}", C_, [C_])
    vv(f"v_lshl_add_u32 v{vDV}, v{A}, 8, v{C_}", vDV, [A, C_])
    vv(f"v_lshl_add_u32 v{vDW}, v{A}, 13, v{C_}", vDW, [A, C_])
    vv(f"v_xor_b32 v{vDW+1}, 32, v{vDW}", vDW+1, [vDW])
    vv(f"v_and_b32 v{C_}, 31, v{vL}", C_, [vL])
    vv(f"v_lshrrev_b32 v{D_}, 5, v{vL}", D_, [vL])
    if XD:
        e.s("s_movk_i32 s3, 1280", w=S(3))
        vv(f"v_mul_lo_u32 v{vX}, v{C_}, s3", vX, [C_]); vv(f"v_lshl_add_u32 v{vX}, v{D_}, 5, v{vX}", vX, [D_, vX])
        vv(f"v_mul_lo_u32 v109, v{Bq}, s3", 109, [Bq]); vv(f"v_lshl_add_u32 v109, v{D_}, 5, v109", 109, [D_, 109])
        vv(f"v_and_b32 v113, 16, v{vL}", 113, [vL]); vv(f"v_add_u32 v109, v109, v113", 109, [109, 113])
    else: vv(f"v_lshlrev_b32 v{vX}, 4, v{vL}", vX, [vL])
    e.wait(lg0=True)
    e.s(f"s_cmp_eq_u32 s{sBR}, 0")
    mk_srd(e, sK, 66, 76, 67108864); mk_srd(e, sV, 68, 78, 67108864)
    mk_srd(e, sW, 70, 80, 5242880)
    if XD: mk_srd(e, 8, 64, 74, 2949120)
    mk_srd(e, sO, 86, None, WSZ)
    seq = [('K', 0)]
    for j in range(7): seq += [('K', j + 1), ('V', j)]
    seq += [('V', 7)]
    def slot_of(n): return ((n + 3) % 4) * SLOT
    DT = [107, 108]
    def issue_kv(n, us=(0, 1, 2, 3), tmp=None):
        if n > 15: return
        kind, j = seq[n]
        tmp = tmp or DT
        e.s(f"s_add_u32 s{sT0}, s{sKO}, {j*16384}", w=S(sT0))
        e.s(f"s_add_u32 m0, s{sLW}, {KVB + slot_of(n)}", w=[('m0', 0)])
        for u in us:
            x = (64*u) if kind == 'K' else (32*(u & 1))
            base = vDK if kind == 'K' else vDV
            a = base
            if x:
                a = tmp[u & 1]
                vv(f"v_xor_b32 v{a}, {x}, v{base}", a, [base])
            e.dma(a, sK if kind == 'K' else sV, sT0, u*1024, ('kv', n), KVFL)
    RING = int(os.environ.get('RING', '8'))
    E1, E2 = [int(x) for x in os.environ.get('RE', '2,5').split(',')]
    def wsub(c): return (16384 + (8 - RING) * 8192 + ((c - 12 - (8 - RING)) % RING) * 8192) % 65536
    QD = {8: 6, 6: 5, 4: 3}[RING]
    KVS = {8: {14: 1, 16: 2, 18: 3}, 6: {E1: 1, 16: 2, 18: 3}, 4: {E1: 1, E2: 2, 18: 3}}[RING]
    XBUF = [0, 12, 24, 36, 48, 116, 128]
    TR = os.environ.get('TR', '0') == '1'
    if TR:
        def wsub(c): return [2, 3, 4, 5, 0, 1][(c - 14) % 6] * 8192
        QD = 5; KVS = {16: 1, 18: 2, 19: 3}
        e.s(f"s_lshl_b32 s52, s{sWV}, 8", w=S(52)); e.s(f"s_add_u32 s{sXO+1}, s{sXO+1}, s52", w=S(sXO+1))
        vv(f"v_lshlrev_b32 v109, 2, v{vL}", 109, [vL])
    R_TO = 144
    def issue_w(c):
        if c > 19: return
        for u in range(2):
            e.s(f"s_add_u32 s{sT0}, s{sWO}, {c*262144 + u*32768}", w=S(sT0))
            e.s(f"s_add_u32 m0, s39, {wsub(c) + u*1024}", w=[('m0', 0)])
            if 'nowd' not in EXP1: e.dma(vDW + u, sW, sT0, 0, ('w', c), WQFL)
        if XD:
            b0 = XBUF[c % 7]
            for s in range(2): e.bload(b0 + 4*s, 4, vX, 8, sXO, 64*c + 16*s, ('w', c), XFL)
            e.bload(b0 + 8, 4, 109, 8, sXO + 1, 64*c, ('w', c), XFL)
            return
        e.s(f"s_add_u32 s{sT1}, s{sXO}, {c*2048}", w=S(sT1))
        e.s(f"s_add_u32 s{sT2}, s{sXO+1}, {c*1024}", w=S(sT2))
        b0 = XBUF[c % 7]
        for s in range(2): e.bload(b0 + 4*s, 4, vX, sO, sT1, 1024*s, ('w', c), XFL)
        if TR:
            e.s(f"s_add_u32 m0, s52, {49152 + (c % 8)*1024}", w=[('m0', 0)])
            e.ins(f"buffer_load_dword v109, {sr(sO,4)}, s{sT2} offen offset:0 lds", 'dma', r=V(109) + S(sO, 4) + S(sT2) + [('m0', 0)])
            e.vm.append(('w', c))
        else: e.bload(b0 + 8, 4, vX, sO, sT2, 0, ('w', c), XFL)
    for c in range(QD): issue_w(c)
    issue_kv(0)
    if os.environ.get('K1TOUCH', '0') == '1':
        e.s(f"s_add_u32 m0, s{sLW}, {KVB + 3*SLOT}", w=[('m0', 0)])
        e.s(f"s_and_b32 s3, s{sH}, 7", w=S(3)); e.s("s_mul_i32 s3, s3, 25600", w=S(3)); e.s(f"s_mul_i32 s4, s{sWV}, 6400", w=S(4))
        e.s("s_add_u32 s3, s3, s4", w=S(3)); e.s(f"s_add_u32 s3, s3, s{sXO+1}", w=S(3)); e.s(f"s_sub_u32 s3, s3, {4*40960}", w=S(3))
        e.s("s_add_u32 s4, s3, 3072", w=S(4))
        for k in range(3): e.dma(vX, sO, 3, 1024*k, 'touch')
        for k in range(4): e.dma(vX, sO, 4, 1024*k, 'touch')
        e.s(f"s_and_b32 s3, s{sB}, 7", w=S(3)); e.s("s_mul_i32 s3, s3, 80", w=S(3)); e.s(f"s_mul_i32 s4, s{sWV}, 20", w=S(4))
        e.s("s_add_u32 s3, s3, s4", w=S(3)); e.s("s_lshl_b32 s3, s3, 13", w=S(3)); e.s(f"s_lshl_b32 s4, s{sH}, 8", w=S(4)); e.s("s_add_u32 s3, s3, s4", w=S(3))
        for k in range(5):
            e.dma(vDW, sW, 3, 0, 'touch')
            if k < 4: e.s("s_add_u32 s3, s3, 32768", w=S(3))
    R4, CC, DH, LOWC, SUB = E_, F_, 110, 111, 112
    vv(f"v_lshrrev_b32 v{R4}, 2, v{Bq}", R4, [Bq])
    vv(f"v_and_b32 v{CC}, 3, v{vL}", CC, [vL])
    vv(f"v_and_b32 v{DH}, 1, v{A}", DH, [A])
    vv(f"v_and_b32 v{LOWC}, 1, v{CC}", LOWC, [CC])
    vv(f"v_lshl_add_u32 v{LOWC}, v{DH}, 1, v{LOWC}", LOWC, [DH, LOWC])
    vv(f"v_lshrrev_b32 v{SUB}, 1, v{CC}", SUB, [CC])
    vv(f"v_lshlrev_b32 v{SUB}, 3, v{SUB}", SUB, [SUB])
    for u in range(4):
        e.s(f"s_add_u32 s3, s{sWV}, {u}", w=S(3)); e.s("s_and_b32 s3, s3, 3", w=S(3))
        e.s(f"s_lshl_b32 s{sKX+2*u}, s3, 6", w=S(sKX+2*u)); e.s(f"s_xor_b32 s{sKX+2*u+1}, s{sKX+2*u}, 32", w=S(sKX+2*u+1))
        vv(f"v_xor_b32 v{X1}, s3, v{R4}", X1, [R4])
        for ee in range(2):
            d = vAW + 2*u + ee
            vv(f"v_xor_b32 v{X2}, {2*ee}, v{LOWC}", X2, [LOWC])
            vv(f"v_lshl_add_u32 v{X2}, v{X1}, 2, v{X2}", X2, [X1, X2])
            vv(f"v_lshl_add_u32 v{X2}, v{X2}, 4, v{SUB}", X2, [X2, SUB])
            vv(f"v_lshl_add_u32 v{X2}, v{R4}, 8, v{X2}", X2, [R4, X2])
            vv(f"v_lshl_add_u32 v{d}, v{D_}, 12, v{X2}", d, [D_, X2])
            if ee: vv(f"v_add_u32 v{d}, 1024, v{d}", d, [d])
    vv(f"v_lshlrev_b32 v{X2}, 1, v{D_}", X2, [D_])
    vv(f"v_xor_b32 v{X2}, v{X2}, v{LOWC}", X2, [X2, LOWC])
    vv(f"v_lshl_add_u32 v{X2}, v{R4}, 2, v{X2}", X2, [R4, X2])
    vv(f"v_lshl_add_u32 v{X2}, v{X2}, 4, v{SUB}", X2, [X2, SUB])
    vv(f"v_lshl_add_u32 v{X2}, v{R4}, 8, v{X2}", X2, [R4, X2])
    vv(f"v_lshl_add_u32 v{X2}, v{D_}, 10, v{X2}", X2, [D_, X2])
    vv(f"v_add_u32 v{vVA}, {KVB}, v{X2}", vVA, [X2])
    vv(f"v_lshrrev_b32 v{X1}, 1, v{CC}", X1, [CC])
    vv(f"v_lshl_or_b32 v{X1}, v{R4}, 2, v{X1}", X1, [R4, X1])
    vv(f"v_lshlrev_b32 v{X2}, 1, v{DH}", X2, [DH])
    vv(f"v_xor_b32 v{X1}, v{X1}, v{X2}", X1, [X1, X2])
    vv(f"v_and_b32 v{X2}, 1, v{CC}", X2, [CC])
    vv(f"v_lshlrev_b32 v{X2}, 3, v{X2}", X2, [X2])
    vv(f"v_lshl_add_u32 v{X1}, v{X1}, 4, v{X2}", X1, [X1, X2])
    vv(f"v_lshl_add_u32 v{X1}, v{R4}, 8, v{X1}", X1, [R4, X1])
    vv(f"v_lshl_add_u32 v{X1}, v{A}, 10, v{X1}", X1, [A, X1])
    e.s(f"s_add_u32 s43, s{sLW}, {KVB}", w=S(43))
    vv(f"v_add_u32 v{vV9}, s43, v{X1}", vV9, [X1])
    e.s(f"s_lshl_b32 s3, s{sWV}, 2", w=S(3))
    vv(f"v_add_u32 v{X1}, s3, v{D_}", X1, [D_])
    vv(f"v_xor_b32 v{X1}, v{X1}, v{Bq}", X1, [X1, Bq])
    vv(f"v_lshlrev_b32 v{X1}, 4, v{X1}", X1, [X1])
    vv(f"v_lshl_add_u32 v{vT2}, v{Bq}, 8, v{X1}", vT2, [Bq, X1])
    vv(f"v_xor_b32 v{X1}, v{D_}, v{Bq}", X1, [D_, Bq])
    vv(f"v_lshlrev_b32 v{X1}, 4, v{X1}", X1, [X1])
    vv(f"v_lshl_add_u32 v{X1}, v{C_}, 8, v{X1}", X1, [C_, X1])
    vv(f"v_add_u32 v{vKA}, {KVB}, v{X1}", vKA, [X1])
    AFB = 64
    def qsync(c):
        if c > 19: return
        e.wait(vm=[('w', c)])
        e.barrier()
    def qrd(k):
        if k >= 40: return
        c, s = divmod(k, 2)
        if TR and s == 0: e.dsr("ds_read_b128", XBUF[c % 7] + 8, 4, vX, 49152 + (c % 8)*1024, ('a', k, 0))
        for u in range(4):
            for ee in range(2):
                e.dsr("ds_read_b64_tr_b16", AFB + 16*(k % 2) + 4*u + 2*ee, 2, vAW + 2*u + ee, wsub(c) + 2048*s, ('a', k, u))
    QP = os.environ.get("K1QPRIO", "0")
    if QP != '0': e.s(f's_setprio {QP}')
    KVT = [int(x) for x in os.environ.get('KVT', '').split(',') if x]
    KVTF = os.environ.get('KVTF', ' nt')
    if KVT:
        vv(f"v_lshlrev_b32 v109, 7, v{vL}", 109, [vL])
        e.s(f"s_add_u32 s52, s{sKO}, s{sLW}", w=S(52))
    qsync(0); qrd(0); qrd(1)
    for k in range(40):
        c, s = divmod(k, 2)
        xb = XBUF[c % 7]
        for u in range(4):
            e.wait(lg=[('a', k, u)])
            a = AFB + 16*(k % 2) + 4*u
            e.mfma32(R_QA + 16*u, a, xb + 4*s, None if k == 0 else R_QA + 16*u)
            if u == 0:
                ta = R_TA if s == 0 else R_TO
                e.mfma32(ta, a, xb + 8, None if k < 2 else ta)
            if u == 1 and s == 0:
                qsync(c + 1)
                if c + 1 > 19: e.barrier()
                for t in range(8):
                    if KVT and KVT[t] == c:
                        assert c <= 13
                        e.s(f"s_add_u32 s{sT0}, s52, {(t >> 1)*32768}", w=S(sT0))
                        e.bload(113, 1, 109, sV if t & 1 else sK, sT0, 0, 'kvt', KVTF)
                issue_w(c + QD)
                if c in KVS: issue_kv(KVS[c])
        qrd(k + 2)
    if 'stamp' in EXP1: e.s('s_memrealtime s[98:99]'); e.wait(lg0=True)
    TT = 64
    if QP != '0': e.s('s_setprio 0')
    for k in range(16): e.v(f"v_mov_b32 v{TT+k}, v{R_TA+k}", w=V(TT+k), r=V(R_TA+k))
    for k in range(16): e.ins(f"v_permlane16_swap_b32 v{R_TO+k}, v{TT+k}", 'perm', w=V(R_TO+k) + V(TT+k), r=V(R_TO+k) + V(TT+k))
    for k in range(16): e.v(f"v_add_f32 v{R_TA+k}, v{R_TA+k}, v{TT+k}", w=V(R_TA+k), r=V(R_TA+k) + V(TT+k))
    for k in range(8):
        e.v(f"v_cvt_pk_bf16_f32 v{R_SB+k}, v{R_TA+2*k}, v{R_TA+2*k+1}", w=V(R_SB+k), r=V(R_TA+2*k, 2))
    e.v(f"v_xor_b32 v{T0}, 32, v{vT2}", w=V(T0), r=V(vT2))
    e.wait(lg0=True); e.barrier()
    e.s("s_mov_b32 exec_lo, 0xffff"); e.s("s_mov_b32 exec_hi, 0xffff"); e.nop(1)
    e.dsw("ds_write_b128", vT2, R_SB, 4, Q9B); e.dsw("ds_write_b128", T0, R_SB + 4, 4, Q9B)
    e.s("s_mov_b64 exec, -1"); e.nop(1)
    for k in range(32):
        e.v(f"v_cvt_pk_bf16_f32 v{R_Q+k}, v{R_QA+2*k}, v{R_QA+2*k+1}", w=V(R_Q+k), r=V(R_QA+2*k, 2))
    NB = 8
    AT = [T0+6, T0+7]
    DT[:] = [T0+4, T0+5]
    reads = []
    mf = []
    atog = [0]
    def addr(base, x, sg=None):
        if sg is None and x == 0: return base
        a = AT[atog[0]]; atog[0] ^= 1
        if sg is not None: vv(f"v_xor_b32 v{a}, s{sg}, v{base}", a, [base])
        else: vv(f"v_xor_b32 v{a}, {x}, v{base}", a, [base])
        return a
    def add_K(n, j):
        sb = slot_of(n); RS = R_SA if j % 2 == 0 else R_SB; s9 = S9A if j % 2 == 0 else S9B
        for s in range(4):
            st = {}
            def rq(d, i, s=s, st=st):
                st['a'] = addr(vK9, 64*s); e.dsr("ds_read_b128", d, 4, st['a'], Q9B, ('r', i))
            def rk(d, i, s=s, st=st):
                a = AT[atog[0]]; atog[0] ^= 1
                vv(f"v_add_u32 v{a}, s43, v{st['a']}", a, [st['a']]); e.dsr("ds_read_b128", d, 4, a, sb, ('r', i))
            reads.append((n, rq)); reads.append((n, rk))
            mf.append(([len(reads)-2, len(reads)-1], lambda r, s=s: e.mfma16(s9, r[1], r[0], None if s == 0 else s9), 0.5))
        for s in range(8):
            st = {}
            def r0(d, i, s=s, st=st):
                st['a'] = addr(vKA, 0, sKX + s); e.dsr("ds_read_b128", d, 4, st['a'], sb, ('r', i))
            def r1(d, i, s=s, st=st): e.dsr("ds_read_b128", d, 4, st['a'], sb + 8192, ('r', i))
            for kt, rf in enumerate((r0, r1)):
                reads.append((n, rf))
                mf.append(([len(reads)-1], lambda r, s=s, kt=kt: e.mfma32(RS + 16*kt, r[0], R_Q + 4*s, None if s == 0 else RS + 16*kt), 1))
    def add_V(n, j):
        sb = slot_of(n); RS = R_SA if j % 2 == 0 else R_SB
        for t in range(0, 8, 2):
            def r9(d, i, t=t):
                for ee in range(2):
                    a = addr(vV9, 32*(t+ee)); e.dsr("ds_read_b64_tr_b16", d + 2*ee, 2, a, sb, ('r', i))
            reads.append((n, r9))
            def m9(r, t=t):
                for ee in range(2): e.mfma16k16(R_O9 + 4*(t+ee), r[0] + 2*ee, P9, None if j == 0 else R_O9 + 4*(t+ee))
            mf.append(([len(reads)-1], m9, 1))
        for s in range(4):
            for t in range(4):
                def rv(d, i, s=s, t=t):
                    a = addr(vVA, 64*t)
                    for ee in range(2): e.dsr("ds_read_b64_tr_b16", d + 2*ee, 2, a, sb + 4096*s + 2048*ee, ('r', i))
                reads.append((n, rv))
                mf.append(([len(reads)-1], lambda r, s=s, t=t: e.mfma32(R_O + 16*t, r[0], RS + 8*s, None if (j == 0 and s == 0) else R_O + 16*t), 1))
    marks = {}
    for n, (kind, j) in enumerate(seq):
        marks[(kind, j)] = len(mf)
        (add_K if kind == 'K' else add_V)(n, j)
    resc = []
    def softmax(j):
        RS = R_SA if j % 2 == 0 else R_SB; s9 = S9A if j % 2 == 0 else S9B
        BM, B2, BM9, B29 = T0, T0+1, T0+2, T0+3
        ops = []
        def o(f): ops.append(f)
        def V_(txt, w, r): o(lambda: e.v(txt, w=w, r=r))
        def P_(txt, a, b): o(lambda: e.ins(txt, 'perm', w=V(a) + V(b), r=V(a) + V(b)))
        V_(f"v_max3_f32 v{BM9}, v{s9}, v{s9+1}, v{s9+2}", V(BM9), V(s9, 3))
        V_(f"v_max_f32 v{BM9}, v{BM9}, v{s9+3}", V(BM9), V(BM9) + V(s9+3))
        V_(f"v_mov_b32 v{B29}, v{BM9}", V(B29), V(BM9))
        V_(f"v_max3_f32 v{BM}, v{RS}, v{RS+1}, v{RS+2}", V(BM), V(RS, 3))
        V_(f"v_max3_f32 v{B2}, v{RS+3}, v{RS+4}, v{RS+5}", V(B2), V(RS+3, 3))
        P_(f"v_permlane32_swap_b32 v{BM9}, v{B29}", BM9, B29)
        k = 6; tog = 0
        while k < 32:
            d = BM if tog == 0 else B2
            V_(f"v_max3_f32 v{d}, v{d}, v{RS+k}, v{RS+k+1}", V(d), V(d) + V(RS+k, 2)); k += 2; tog ^= 1
            if k == 8:
                V_(f"v_max_f32 v{BM9}, v{BM9}, v{B29}", V(BM9), V(BM9) + V(B29))
                V_(f"v_mov_b32 v{B29}, v{BM9}", V(B29), V(BM9))
            if k == 14: P_(f"v_permlane16_swap_b32 v{BM9}, v{B29}", BM9, B29)
            if k == 16: V_(f"v_max_f32 v{BM9}, v{BM9}, v{B29}", V(BM9), V(BM9) + V(B29))
            if k == 18 and j > 0: V_(f"v_sub_f32 v{B29}, v{BM9}, v{M9}", V(B29), V(BM9) + V(M9))
        V_(f"v_max_f32 v{BM}, v{BM}, v{B2}", V(BM), V(BM) + V(B2))
        V_(f"v_mov_b32 v{B2}, v{BM}", V(B2), V(BM))
        ops.append('gap')
        P_(f"v_permlane32_swap_b32 v{BM}, v{B2}", BM, B2)
        V_(f"v_max_f32 v{BM}, v{BM}, v{B2}", V(BM), V(BM) + V(B2))
        if j == 0:
            V_(f"v_mov_b32 v{M_}, v{BM}", V(M_), V(BM)); V_(f"v_mov_b32 v{M9}, v{BM9}", V(M9), V(BM9))
            V_(f"v_mul_f32 v{MC}, s{sC}, v{BM}", V(MC), V(BM)); V_(f"v_mul_f32 v{MC9}, s{sC}, v{BM9}", V(MC9), V(BM9))
        else:
            V_(f"v_sub_f32 v{B2}, v{BM}, v{M_}", V(B2), V(BM) + V(M_))
            V_(f"v_max_f32 v{B2}, v{B2}, v{B29}", V(B2), V(B2) + V(B29))
            V_(f"v_cmp_lt_f32 vcc, s{sTH}, v{B2}", [('vcc', 0)], V(B2))
            ops.append('gap')
            def br():
                e.nop(2); e.s(f"s_cbranch_vccnz {name}_rs{j}"); e.label(f"{name}_rb{j}"); resc.append(j)
            o(br)
        LA, LB = T0, T0+1
        def fma(r, mc): V_(f"v_fma_f32 v{r}, v{r}, s{sC}, -v{mc}", V(r), V(r) + V(mc))
        def ex(r): o(lambda: e.t(f"v_exp_f32 v{r}, v{r}", w=V(r), r=V(r)))
        for k in range(4): fma(s9 + k, MC9)
        for k in range(4): ex(s9 + k)
        need = {}
        for g8 in range(4):
            b0 = RS + 8*g8
            for k in range(8): fma(b0 + k, MC)
            if g8 == 0:
                V_(f"v_add_f32 v{B29}, v{s9}, v{s9+1}", V(B29), V(s9, 2))
                V_(f"v_add_f32 v{BM9}, v{s9+2}, v{s9+3}", V(BM9), V(s9+2, 2))
                V_(f"v_cvt_pk_bf16_f32 v{P9}, v{s9}, v{s9+1}", V(P9), V(s9, 2))
                V_(f"v_cvt_pk_bf16_f32 v{P9+1}, v{s9+2}, v{s9+3}", V(P9+1), V(s9+2, 2))
                if j == 0: V_(f"v_add_f32 v{L9}, v{B29}, v{BM9}", V(L9), V(B29) + V(BM9))
                else:
                    V_(f"v_add_f32 v{B29}, v{B29}, v{BM9}", V(B29), V(B29) + V(BM9))
                    V_(f"v_add_f32 v{L9}, v{L9}, v{B29}", V(L9), V(L9) + V(B29))
                need['t'] = len(ops)
            for k in range(8): ex(b0 + k)
            for k in range(4):
                a, b = b0 + 2*k, b0 + 2*k + 1
                if g8 == 0 and k == 0:
                    if j == 0: V_(f"v_mov_b32 v{L_}, v{a}", V(L_), V(a))
                    else: V_(f"v_add_f32 v{L_}, v{L_}, v{a}", V(L_), V(L_) + V(a))
                    V_(f"v_mov_b32 v{LB}, v{b}", V(LB), V(b))
                else:
                    V_(f"v_add_f32 v{L_}, v{L_}, v{a}", V(L_), V(L_) + V(a)); V_(f"v_add_f32 v{LB}, v{LB}, v{b}", V(LB), V(LB) + V(b))
                V_(f"v_cvt_pk_bf16_f32 v{b0+k}, v{a}, v{b}", V(b0+k), V(a) + V(b))
            need[g8] = len(ops)
        V_(f"v_add_f32 v{L_}, v{L_}, v{LB}", V(L_), V(L_) + V(LB))
        return ops, need
    nm = len(mf)
    plan = [[] for _ in range(nm + 1)]
    for j in range(8):
        ops, need = softmax(j)
        ops = [x for x in ops]
        start = marks[('K', j)] + 21
        if j > 0: start = max(start, marks[('V', j-1)] + (21 if j < 7 else 20))
        v0 = marks[('V', j)]
        dl = [(need['t'], v0), (need[0], v0 + 4), (need[1], v0 + 8), (need[2], v0 + 12), (need[3], v0 + 16), (len(ops), v0 + 18)]
        done = 0
        import math as _m
        for sl in range(start, v0 + 19):
            req = 0
            for cnt, dline in dl:
                if dline >= sl and cnt > done:
                    tot = sum(mf[i-1][2] for i in range(sl, dline + 1))
                    req = max(req, int(_m.ceil((cnt - done) * mf[sl-1][2] / tot - 1e-9)))
            plan[sl] += ops[done:done + req]; done += req
        assert done == len(ops)
    synced = [-1]
    DELAY = int(os.environ.get('K1DELAY', '2'))
    def do_read(i):
        n, fn = reads[i]
        if n > synced[0]:
            e.wait(vm=[('kv', n)], lg0=True); e.barrier(); synced[0] = n
            if n >= 1: issue_kv(n + 3)
            if n == 4 and WOPF == "2":
                e.s("s_cmp_lt_u32 s2, 512")
                mk_srd(e, sW, 72, 82, 5242880)
                e.s("s_and_b32 s3, s2, 511"); e.s("s_mul_i32 s3, s3, 10240"); e.s(f"s_mul_i32 s4, s{sWV}, 2560"); e.s("s_add_u32 s3, s3, s4", w=S(3))
                e.s("s_mov_b32 m0, 8192", w=[('m0', 0)])
                vv(f"v_lshlrev_b32 v{DT[0]}, 4, v{vL}", DT[0], [vL])
                for k in range(3): e.dma(DT[0], sW, 3, 1024*k, 'pf')
        fn(R_F + 4*(i % NB), i)
    for i in range(NB): do_read(i)
    nxt = NB; free = 0; hold = 0
    for i in range(nm):
        for op in plan[i]:
            if op != 'gap': op()
        rd, fn, _ = mf[i]
        e.wait(lg=[('r', x) for x in rd])
        fn([R_F + 4*(x % NB) for x in rd])
        free += len(rd)
        while free > 0 and nxt < len(reads):
            if reads[nxt][0] > synced[0] and hold < DELAY:
                hold += 1; break
            hold = 0
            do_read(nxt); nxt += 1; free -= 1
    for op in plan[nm]:
        if op != 'gap': op()
    if 'stamp' in EXP1: e.s('s_memrealtime s[100:101]')
    e.wait(lg0=True); e.barrier()
    if WOPF == "1":
        e.s("s_cmp_ge_u32 s2, 512"); e.s(f"s_cbranch_scc1 {name}_nopf")
        e.s("s_cmp_lt_u32 s2, 256")
        mk_srd(e, sW, 72, 82, 5242880)
        e.s("s_and_b32 s3, s2, 255"); e.s("s_mul_i32 s3, s3, 20480"); e.s(f"s_mul_i32 s4, s{sWV}, 5120"); e.s("s_add_u32 s3, s3, s4", w=S(3))
        e.s("s_add_u32 s4, s3, 4096", w=S(4))
        e.v(f"v_lshlrev_b32 v{T0}, 4, v{vL}", w=V(T0), r=V(vL))
        for k in range(4): e.bload(R_Q + 4*k, 4, T0, sW, 3, 1024*k, 'pf')
        e.bload(R_Q + 16, 4, T0, sW, 4, 0, 'pf')
        e.label(f"{name}_nopf")
        e.nop(2)
    X1, X2, X3, X4 = T0, T0+1, T0+2, T0+3
    e.v(f"v_mov_b32 v{X1}, v{L9}", w=V(X1), r=V(L9))
    e.v(f"v_mov_b32 v{X2}, v{L_}", w=V(X2), r=V(L_))
    e.ins(f"v_permlane32_swap_b32 v{L9}, v{X1}", 'perm', w=V(L9) + V(X1), r=V(L9) + V(X1))
    e.ins(f"v_permlane32_swap_b32 v{L_}, v{X2}", 'perm', w=V(L_) + V(X2), r=V(L_) + V(X2))
    e.v(f"v_add_f32 v{L9}, v{L9}, v{X1}", w=V(L9), r=V(L9) + V(X1))
    e.v(f"v_add_f32 v{L_}, v{L_}, v{X2}", w=V(L_), r=V(L_) + V(X2))
    e.v(f"v_mov_b32 v{X1}, v{L9}", w=V(X1), r=V(L9))
    e.t(f"v_rcp_f32 v{L_}, v{L_}", w=V(L_), r=V(L_))
    e.ins(f"v_permlane16_swap_b32 v{L9}, v{X1}", 'perm', w=V(L9) + V(X1), r=V(L9) + V(X1))
    e.v(f"v_add_f32 v{L9}, v{L9}, v{X1}", w=V(L9), r=V(L9) + V(X1))
    q16, gg = X1, X2
    e.v(f"v_and_b32 v{q16}, 15, v{vL}", w=V(q16), r=V(vL))
    e.v(f"v_lshrrev_b32 v{gg}, 4, v{vL}", w=V(gg), r=V(vL))
    e.s(f"s_mul_i32 s3, s{sWV}, 8448", w=S(3)); e.s(f"s_add_u32 s3, s3, {KVB}", w=S(3)); e.s("s_movk_i32 s4, 528", w=S(4))
    e.v(f"v_mul_lo_u32 v{X3}, v{q16}, s4", w=V(X3), r=V(q16))
    e.v(f"v_lshl_add_u32 v{X4}, v{gg}, 4, v{X3}", w=V(X4), r=V(gg) + V(X3))
    e.v(f"v_add_u32 v{X4}, s3, v{X4}", w=V(X4), r=V(X4))
    for t9 in range(8): e.dsw("ds_write_b128", X4, R_O9 + 4*t9, 4, 64*t9)
    e.s(f"s_lshl_b32 s3, s{sWV}, 7", w=S(3)); e.s(f"s_add_u32 s3, s3, {MLB}", w=S(3))
    e.v(f"v_lshlrev_b32 v{X4}, 3, v{q16}", w=V(X4), r=V(q16))
    e.v(f"v_add_u32 v{(T0+5)}, s3, v{X4}", w=V((T0+5)), r=V(X4))
    e.v(f"v_mov_b32 v{M9}, v{MC9}", w=V(M9), r=V(MC9))
    e.dsw("ds_write_b64", (T0+5), M9, 2, 0)
    e.s(f"s_mul_i32 s3, s{sBR}, 72", w=S(3)); e.s(f"s_lshl_b32 s4, s{sB}, 2", w=S(4)); e.s("s_add_u32 s4, s4, s3", w=S(4))
    e.s(f"s_add_u32 s4, s4, s{sWV}", w=S(4)); e.s(f"s_mul_i32 s4, s4, {TS}" if OPAD else "s_lshl_b32 s4, s4, 18", w=S(4))
    e.s(f"s_lshl_b32 s5, s{sH}, 13", w=S(5));
    if OPAD:
        e.s(f"s_lshr_b32 s{sT0}, s{sH}, 3", w=S(sT0)); e.s(f"s_mul_i32 s{sT0}, s{sT0}, {OPAD}", w=S(sT0)); e.s(f"s_add_u32 s5, s5, s{sT0}", w=S(5))
    e.s(f"s_add_u32 s{sT0}, s4, s5", w=S(sT0))
    e.s(f"s_add_u32 s{sT1}, s{sT0}, 4096", w=S(sT1))
    e.s(f"s_lshr_b32 s4, s{sB}, 1", w=S(4)); e.s("s_add_u32 s4, s4, s3", w=S(4)); e.s("s_add_u32 s4, s4, 64", w=S(4))
    e.s(f"s_mul_i32 s4, s4, {TS}" if OPAD else "s_lshl_b32 s4, s4, 18", w=S(4)); e.s(f"s_add_u32 s{sT2}, s4, s5", w=S(sT2))
    e.v(f"v_lshlrev_b32 v{vT2}, 4, v{vL}", w=V(vT2), r=V(vL))
    for ks in range(8):
        b0 = R_O + 8*ks
        for k in range(8): e.v(f"v_mul_f32 v{b0+k}, v{b0+k}, v{L_}", w=V(b0+k), r=V(b0+k) + V(L_))
        for k in range(4): e.v(f"v_cvt_pk_bf16_f32 v{b0+k}, v{b0+2*k}, v{b0+2*k+1}", w=V(b0+k), r=V(b0+2*k, 2))
        e.bstore(b0, 4, vT2, sO, sT0 if ks < 4 else sT1, 1024*(ks % 4), fl=OSFL)
    e.wait(lg0=True); e.barrier()
    B0 = R_SA
    e.v(f"v_lshlrev_b32 v{X4}, 3, v{q16}", w=V(X4), r=V(q16))
    e.v(f"v_add_u32 v{X4}, {MLB}, v{X4}", w=V(X4), r=V(X4))
    for w_ in range(4): e.dsr("ds_read_b64", B0 + 2*w_, 2, X4, 128*w_, 'ml')
    e.s(f"s_lshl_b32 s3, s{sWV}, 7", w=S(3))
    e.v(f"v_lshl_add_u32 v{X3}, v{gg}, 5, v{X3}", w=V(X3), r=V(gg) + V(X3))
    e.v(f"v_add_u32 v{X3}, s3, v{X3}", w=V(X3), r=V(X3))
    for w_ in range(4):
        for hh in range(2): e.dsr("ds_read_b128", R_F + 8*w_ + 4*hh, 4, X3, KVB + 8448*w_ + 16*hh, 'o9')
    e.wait(lg=['ml'])
    MM, LL = B0 + 8, B0 + 9
    e.v(f"v_max3_f32 v{MM}, v{B0}, v{B0+2}, v{B0+4}", w=V(MM), r=V(B0, 6))
    e.v(f"v_max_f32 v{MM}, v{MM}, v{B0+6}", w=V(MM), r=V(MM) + V(B0+6))
    for w_ in range(4): e.v(f"v_sub_f32 v{B0+2*w_}, v{B0+2*w_}, v{MM}", w=V(B0+2*w_), r=V(B0+2*w_) + V(MM))
    for w_ in range(4): e.t(f"v_exp_f32 v{B0+2*w_}, v{B0+2*w_}", w=V(B0+2*w_), r=V(B0+2*w_))
    e.v(f"v_mul_f32 v{LL}, v{B0}, v{B0+1}", w=V(LL), r=V(B0, 2))
    for w_ in range(1, 4): e.v(f"v_fmac_f32 v{LL}, v{B0+2*w_}, v{B0+2*w_+1}", w=V(LL), r=V(LL) + V(B0+2*w_, 2))
    e.t(f"v_rcp_f32 v{LL}, v{LL}", w=V(LL), r=V(LL))
    for w_ in range(4): e.v(f"v_mul_f32 v{B0+2*w_}, v{B0+2*w_}, v{LL}", w=V(B0+2*w_), r=V(B0+2*w_) + V(LL))
    e.wait(lg0=True)
    for k in range(8):
        e.v(f"v_mul_f32 v{R_F+k}, v{R_F+k}, v{B0}", w=V(R_F+k), r=V(R_F+k) + V(B0))
        for w_ in range(1, 4):
            e.v(f"v_fmac_f32 v{R_F+k}, v{R_F+8*w_+k}, v{B0+2*w_}", w=V(R_F+k), r=V(R_F+k) + V(R_F+8*w_+k) + V(B0+2*w_))
    for k in range(4): e.v(f"v_cvt_pk_bf16_f32 v{R_F+k}, v{R_F+2*k}, v{R_F+2*k+1}", w=V(R_F+k), r=V(R_F+2*k, 2))
    e.s(f"s_and_b32 s3, s{sB}, 1", w=S(3)); e.s("s_lshl_b32 s3, s3, 8", w=S(3))
    e.s(f"s_lshl_b32 s4, s{sWV}, 11", w=S(4)); e.s("s_add_u32 s3, s3, s4", w=S(3))
    e.v(f"v_lshlrev_b32 v{X3}, 9, v{gg}", w=V(X3), r=V(gg))
    e.v(f"v_lshl_add_u32 v{X3}, v{q16}, 4, v{X3}", w=V(X3), r=V(q16) + V(X3))
    e.v(f"v_add_u32 v{X3}, s3, v{X3}", w=V(X3), r=V(X3))
    e.bstore(R_F, 4, X3, sO, sT2, 0, fl=OSFL)
    if 'stamp' in EXP1:
        e.s("s_memtime s[94:95]"); e.s("s_memrealtime s[96:97]"); e.s("s_waitcnt lgkmcnt(0)")
        e.s("s_mov_b32 s88, s86"); e.s("s_mov_b32 s89, s87"); e.s("s_sub_u32 s94, s94, s90")
        e.s("s_mov_b32 s90, 0x8000000"); e.s("s_mov_b32 s91, 0x20000")
        e.s("s_lshl_b32 s3, s2, 4"); e.s("s_add_u32 s3, s3, 0x4000000")
        e.s("s_getreg_b32 s4, hwreg(HW_REG_HW_ID)"); e.s("s_getreg_b32 s5, hwreg(HW_REG_XCC_ID)")
        e.s("s_lshl_b32 s5, s5, 28"); e.s("s_and_b32 s4, s4, 0xfffffff"); e.s("s_or_b32 s4, s4, s5")
        e.v("v_mov_b32 v0, s92", w=V(0)); e.v("v_mov_b32 v1, s96", w=V(1)); e.v("v_mov_b32 v2, s98", w=V(2)); e.v("v_mov_b32 v3, s100", w=V(3)); e.v("v_mov_b32 v4, s3", w=V(4))
        e.nop(4)
        e.raw("    buffer_store_dwordx4 v[0:3], v4, s[88:91], 0 offen")
    e.label(f"{name}_end")
    e.raw("    s_endpgm")
    for j in resc:
        e.label(f"{name}_rs{j}")
        e.nop(16)
        BM, BM9, A1, A9 = T0, T0+2, T0+1, T0+3
        e.v(f"v_max_f32 v{BM}, v{BM}, v{M_}", w=V(BM), r=V(BM) + V(M_))
        e.v(f"v_max_f32 v{BM9}, v{BM9}, v{M9}", w=V(BM9), r=V(BM9) + V(M9))
        e.v(f"v_sub_f32 v{A1}, v{M_}, v{BM}", w=V(A1), r=V(M_) + V(BM))
        e.v(f"v_sub_f32 v{A9}, v{M9}, v{BM9}", w=V(A9), r=V(M9) + V(BM9))
        e.v(f"v_mul_f32 v{A1}, s{sC}, v{A1}", w=V(A1), r=V(A1)); e.v(f"v_mul_f32 v{A9}, s{sC}, v{A9}", w=V(A9), r=V(A9))
        e.t(f"v_exp_f32 v{A1}, v{A1}", w=V(A1), r=V(A1)); e.t(f"v_exp_f32 v{A9}, v{A9}", w=V(A9), r=V(A9))
        e.v(f"v_mov_b32 v{M_}, v{BM}", w=V(M_), r=V(BM)); e.v(f"v_mov_b32 v{M9}, v{BM9}", w=V(M9), r=V(BM9))
        e.v(f"v_mul_f32 v{MC}, s{sC}, v{BM}", w=V(MC), r=V(BM)); e.v(f"v_mul_f32 v{MC9}, s{sC}, v{BM9}", w=V(MC9), r=V(BM9))
        e.v(f"v_mul_f32 v{L_}, v{L_}, v{A1}", w=V(L_), r=V(L_) + V(A1)); e.v(f"v_mul_f32 v{L9}, v{L9}, v{A9}", w=V(L9), r=V(L9) + V(A9))
        for k in range(64): e.v(f"v_mul_f32 v{R_O+k}, v{R_O+k}, v{A1}", w=V(R_O+k), r=V(R_O+k) + V(A1))
        for k in range(32): e.v(f"v_mul_f32 v{R_O9+k}, v{R_O9+k}, v{A9}", w=V(R_O9+k), r=V(R_O9+k) + V(A9))
        e.nop(4)
        e.s(f"s_branch {name}_rb{j}")
    return e.text()
```
